```python
import torch

def _softmax(x, axis=-1):
    return torch.softmax(x, dim=axis)
def _gelu(x):
    return torch.nn.functional.gelu(x, approximate="tanh")
def _silu(x):
    return torch.nn.functional.silu(x)
def _sigmoid(x):
    return torch.sigmoid(x)
def _layernorm(x, axis=-1, eps=1e-5):
    m = x.mean(dim=axis, keepdim=True)
    v = x.var(dim=axis, keepdim=True, unbiased=False)
    return (x - m) / torch.sqrt(v + eps)
def _scatter_add(tgt, idx, src, axis=0):
    return tgt.clone().index_add_(axis, idx, src)
def _segment_sum(src, seg, n):
    out = torch.zeros((n,) + src.shape[1:], dtype=src.dtype)
    return out.index_add_(0, seg, src)
def _pad(x, pw):
    flat = tuple(v for pair in reversed(pw) for v in pair)
    return torch.nn.functional.pad(x, flat)

kernel_name = 'interleave_layers__sliding_block_cached__dense_activation_mish__decode'

def setup_inputs():

    _w = (lambda a: (lambda t: t.to(torch.bfloat16) if t.is_floating_point() else t)(torch.as_tensor(a)))
    def _A_setup():
        B, Sq, D = 1, 1, 512
        Hq, Hkv, Sk, Dh = 32, 8, 65536, 128
        assert Hq % Hkv == 0, (Hq, Hkv)
        return {
            "x": _w((lambda *s: torch.randn(*s, dtype=torch.bfloat16) * 0.05)(B, Sq, D)),
            "k_cache": _w((lambda *s: torch.randn(*s, dtype=torch.bfloat16) * 0.8)(B, Hkv, Sk, Dh)),
            "v_cache": _w((lambda *s: torch.randn(*s, dtype=torch.bfloat16) * 1.6)(B, Hkv, Sk, Dh)),
            "wq": _w((lambda *s: torch.randn(*s, dtype=torch.bfloat16) * 0.8)(D, Hq * Dh) * (D ** -0.5)),
            "wo": _w((lambda *s: torch.randn(*s, dtype=torch.bfloat16) * 1.6)(Hq * Dh, D) * ((Hq * Dh) ** -0.5)),
        }
    _A_in = _A_setup()

    def _B_setup():
        B, S, D, F = 1, 1, 512, 1792
        return {
            "x": _w((lambda *s: torch.randn(*s, dtype=torch.bfloat16) * 0.05)(B, S, D)),
            "w1": _w((lambda *s: torch.randn(*s, dtype=torch.bfloat16) * 1.6)(D, F) * (D ** -0.5)),
            "b1": _w((lambda *s: torch.randn(*s, dtype=torch.bfloat16) * 0.4)(F)),
            "w2": _w((lambda *s: torch.randn(*s, dtype=torch.bfloat16) * 0.2)(F, D) * (F ** -0.5)),
        }
    _B_in = _B_setup()

    return {
        "A_x": _A_in["x"],
        "A_k_cache": _A_in["k_cache"],
        "A_v_cache": _A_in["v_cache"],
        "A_wq": _A_in["wq"],
        "A_wo": _A_in["wo"],
        "B_x": _B_in["x"],
        "B_w1": _B_in["w1"],
        "B_b1": _B_in["b1"],
        "B_w2": _B_in["w2"],
    }

def reference(A_x, A_k_cache, A_v_cache, A_wq, A_wo, B_x, B_w1, B_b1, B_w2):
    def _A_ref(x, k_cache, v_cache, wq, wo):
        B, Sq, D = x.shape
        Hq, Dh = 32, 128
        Hkv, Sk = k_cache.shape[1], k_cache.shape[2]
        W = min(4096, max(256, Sk // 4))
        rep = Hq // Hkv
        q = (lambda x, *d: x.permute(*d))((x @ wq).reshape(B, Sq, Hq, Dh), 0, 2, 1, 3)
        k = (lambda x, n, axis: torch.repeat_interleave(x, n, dim=axis))(k_cache[:, :, Sk - W:, :], rep, axis=1)
        v = (lambda x, n, axis: torch.repeat_interleave(x, n, dim=axis))(v_cache[:, :, Sk - W:, :], rep, axis=1)
        scores = torch.einsum("bhqd,bhkd->bhqk", q, k) * (Dh ** -0.5)
        p = _softmax(scores, axis=-1)
        o = torch.einsum("bhqk,bhkd->bhqd", p, v)
        return (lambda x, *d: x.permute(*d))(o, 0, 2, 1, 3).reshape(B, Sq, Hq * Dh) @ wo

    def _B_ref(x, w1, b1, w2):
        h = torch.einsum("bsd,df->bsf", x, w1) + b1
        sp = torch.log1p(torch.exp(-torch.abs(h))) + torch.where(h > 0, h, torch.zeros_like(h))
        act = h * torch.tanh(sp)
        return torch.einsum("bsf,fd->bsd", act, w2)

    x = A_x
    x = x + _A_ref(_layernorm(x, axis=-1), A_k_cache, A_v_cache, A_wq, A_wo)
    x = x + _B_ref(_layernorm(x, axis=-1), B_w1, B_b1, B_w2)
    x = x + _A_ref(_layernorm(x, axis=-1), A_k_cache, A_v_cache, A_wq, A_wo)
    x = x + _B_ref(_layernorm(x, axis=-1), B_w1, B_b1, B_w2)
    return x
```

```python
import re

TRANS = ('v_exp_f32', 'v_log_f32', 'v_rcp_f32', 'v_rsq_f32', 'v_sqrt_f32', 'v_sin_f32', 'v_cos_f32')

def _regs(tok):
    tok = tok.strip()
    tok = re.sub(r'^-', '', tok)
    m = re.match(r'^abs\((.*)\)$', tok)
    if m: tok = m.group(1)
    m = re.match(r'^\|(.*)\|$', tok)
    if m: tok = m.group(1)
    m = re.match(r'^([vsa])\[(\d+):(\d+)\]$', tok)
    if m:
        return [f'{m.group(1)}{i}' for i in range(int(m.group(2)), int(m.group(3)) + 1)]
    if re.match(r'^[vsa]\d+$', tok): return [tok]
    if tok in ('vcc', 'vcc_lo', 'vcc_hi'): return ['vcc']
    if tok in ('exec', 'exec_lo', 'exec_hi'): return ['exec']
    if tok == 'm0': return ['m0']
    return []

class Ins:
    def __init__(self, text):
        self.text = text
        t = text.split(';')[0].strip()
        parts = t.split(None, 1)
        self.op = parts[0]
        rest = parts[1] if len(parts) > 1 else ''
        ops, depth, cur = [], 0, ''
        for ch in rest:
            if ch in '[(': depth += 1
            if ch in '])': depth -= 1
            if ch == ',' and depth == 0:
                ops.append(cur); cur = ''
            else: cur += ch
        if cur.strip(): ops.append(cur)
        if ops:
            last = ops[-1].strip().split()
            ops[-1] = last[0] if last else ''
            self.mods = ' '.join(last[1:])
        else: self.mods = ''
        self.ops = [o.strip() for o in ops]
        op = self.op
        self.is_mfma = op.startswith('v_mfma')
        self.is_valu = op.startswith('v_') and not self.is_mfma
        self.is_vmem = op.startswith(('buffer_', 'global_'))
        self.is_ds = op.startswith('ds_')
        self.is_salu = op.startswith('s_')
        self.is_dpp = '_dpp' in op or 'row_' in self.mods or 'quad_perm' in self.mods
        self.is_perml = op.startswith('v_permlane')
        self.is_trans = op.replace('_e32', '').replace('_e64', '') in TRANS
        self.is_rdlane = op.startswith(('v_readlane', 'v_readfirstlane'))
        self.w, self.r = [], []
        R = [_regs(o) for o in self.ops]
        if self.is_mfma:
            self.w = R[0]; self.r = R[1] + R[2] + R[3]; self.srcc = R[3]
        elif self.is_valu:
            if op.startswith('v_cmp'):
                self.w = R[0]; self.r = sum(R[1:], [])
            elif self.is_perml:
                self.w = R[0] + R[1]; self.r = R[0] + R[1]
            else:
                self.w = R[0]; self.r = sum(R[1:], [])
                if op.startswith(('v_fmac', 'v_dot2c', 'v_writelane')) or 'row_mask:0x' in self.mods and 'row_mask:0xf' not in self.mods or 'UNUSED_PRESERVE' in self.mods:
                    self.r += R[0]
                if op.startswith('v_cndmask') and len(self.ops) == 3: self.r.append('vcc')
                if '_co_' in op: self.w += R[1]
        elif self.is_vmem:
            if 'store' in op or ('atomic' in op):
                self.r = sum(R, [])
            elif 'lds' in self.mods.split():
                self.r = sum(R, []) + ['m0']
            else:
                self.w = R[0]; self.r = sum(R[1:], [])
        elif self.is_ds:
            if op.startswith(('ds_read', 'ds_bpermute', 'ds_permute', 'ds_swizzle')):
                self.w = R[0]; self.r = sum(R[1:], [])
            else:
                self.r = sum(R, [])
        elif self.is_salu:
            if op.startswith(('s_cmp', 's_cbranch', 's_branch', 's_waitcnt', 's_nop', 's_barrier', 's_sleep', 's_endpgm', 's_setprio')):
                self.r = sum(R, [])
            else:
                self.w = R[0] if R else []; self.r = sum(R[1:], [])
        self.states = 1
        if op == 's_nop': self.states = int(self.ops[0], 0) + 1

class Asm:
    def __init__(self):
        self.lines = []
        self.hist = []
        self.nlabel = 0
        self.nops_inserted = 0
    def raw(self, s): self.lines.append(s)
    def comment(self, s): self.lines.append('    ; ' + s)
    def label(self, name):
        self.lines.append(name + ':')
    def newlabel(self, base):
        self.nlabel += 1
        return f'L_{base}_{self.nlabel}'
    def need(self, ins):
        need = 0
        dist = 0
        for p in reversed(self.hist):
            req = 0
            pw = set(p.w)
            rd = set(ins.r); wr = set(ins.w)
            vg = lambda s: {x for x in s if x[0] in 'va' and x not in ('vcc',)}
            sg = lambda s: {x for x in s if x[0] == 's' or x in ('vcc',)}
            if p.is_valu:
                if ins.is_mfma and vg(pw) & rd: req = max(req, 2)
                if ins.is_valu and ins.is_dpp and vg(pw) & rd: req = max(req, 2)
                if ins.is_perml and vg(pw) & rd: req = max(req, 2)
                if ins.is_rdlane and vg(pw) & rd: req = max(req, 1)
                if p.is_trans and (ins.is_valu or ins.is_mfma) and vg(pw) & rd: req = max(req, 1)
                if ins.is_valu and sg(pw) & rd: req = max(req, 4 if ins.op.startswith(('v_readlane', 'v_writelane')) else 2)
                if ins.is_vmem and sg(pw) & rd: req = max(req, 5)
                if 'sdwa' in p.op and 'dst_sel' in p.mods and ins.is_valu and vg(pw) & (rd | wr): req = max(req, 1)
                if 'exec' in pw and (ins.is_dpp): req = max(req, 5)
                if 'exec' in pw and (ins.is_mfma or ins.is_perml or ins.is_rdlane): req = max(req, 4)
            if p.is_mfma:
                if ins.is_mfma:
                    if pw & set(ins.srcc):
                        if set(p.w) != set(ins.srcc): req = max(req, 6)
                    if pw & (set(_regs(ins.ops[1])) | set(_regs(ins.ops[2]))): req = max(req, 8)
                    if pw & wr and set(p.w) != set(ins.srcc): req = max(req, 8)
                elif (ins.is_valu or ins.is_vmem or ins.is_ds) and pw & (rd | wr): req = max(req, 8)
                if ins.is_valu and set(p.srcc) & wr: req = max(req, 3)
            if p.is_vmem and 'store' in p.op and ('x4' in p.op or 'x3' in p.op):
                if vg(set(p.r)) & wr: req = max(req, 2)
            if p.is_salu and 'm0' in pw and 'm0' in rd: req = max(req, 1)
            if req > dist: need = max(need, req - dist)
            dist += p.states
            if dist >= 12: break
        return need
    def __call__(self, text):
        for line in text.strip().split('\n'):
            line = line.strip()
            if not line or line.startswith(';'):
                if line: self.lines.append('    ' + line)
                continue
            if line.endswith(':'):
                self.label(line[:-1]); continue
            ins = Ins(line)
            n = self.need(ins)
            if n > 0:
                self.nops_inserted += n
                nop = Ins(f's_nop {n - 1}')
                self.lines.append(f'    s_nop {n - 1}')
                self.hist.append(nop)
            self.lines.append('    ' + line)
            self.hist.append(ins)
            if len(self.hist) > 32: self.hist = self.hist[-32:]
    def text(self): return '\n'.join(self.lines) + '\n'
```

```python
import sys, struct
from asmlib import Asm

NAME = 'interleave_layers__sliding_block_cached__dense_activation_mish__decode'
DEBUG_TS = '--ts' in sys.argv
OUT = [a for a in sys.argv[1:] if not a.startswith('--')]
OUT = OUT[0] if OUT else f'cdna_kernels/{NAME}.s'
LDFL = 'nt' if '--nont' not in sys.argv else ''

def f32(x): return struct.unpack('<I', struct.pack('<f', x))[0]

XC, ST1, ST2, X1, H3, H4B = 0x1000, 0x2000, 0x2800, 0x4000, 0x8000, 0xC000
H1, CS, H2AS, H3B, CS1, H2A, H2B, H4A, TSB = 0x10000, 0x20000, 0x30000, 0x40000, 0x60000, 0x80000, 0x100000, 0x140000, 0x180000
WS_SIZE = 0x1C0000
WQST, KST, RST = 0, 16384, 49152
XB, QB, ML, O2, HP, OB = 81920, 82432, 83456, 83584, 83648, 84992
LDS_SIZE = 94208
sG, sJ, sW, sKAP = 's4', 's5', 's6', 's7'
rX, rK, rV, rWQ, rWR, rW2, rB1, rWS, rOUT, rCODE = [f's[{b}:{b+3}]' for b in range(8, 48, 4)]
sCG, sI, sROLE, sTAG, sFF, sMODE, sLAYER, sCNT, sXCC, sEP, sSLO, sSHI = [f's{i}' for i in range(48, 60)]
sC4K, sC8K, sC12K, sHIM, sCEXP, sNL2E, sCSD, sCS1D = [f's{i}' for i in range(60, 68)]
sT0, sT1, sT2, sT3 = 's88', 's89', 's90', 's91'
vL, vN, vG4, vTAG, vCOL = 'v1', 'v2', 'v3', 'v4', 'v5'
_addr = ['aXW', 'aXR', 'aH1W', 'aSTW', 'aST2W', 'aH1R', 'aSTR', 'aQW', 'aQR', 'aOW', 'aMW', 'aLW', 'aOR', 'aMLR',
         'aH2AW', 'aH2ASW', 'aH2AR', 'aH2ASR', 'aO2W', 'aO2R', 'aPW', 'aRR', 'aRW', 'aSFH', 'aSFQ', 'aX1W', 'aX1R',
         'aHPW', 'aHPR', 'aH3BW', 'aH3BR', 'aOUT']
A = {n: f'v{8 + i}' for i, n in enumerate(_addr)}
assert len(_addr) <= 32
VRAW = 40
VOP = 76
W2F = 108
W2R = 140
ONES = 156
vCS0, vCS1, vCSM, vB1, vXRES, vTS, vXN, vMU, vRS = [f'v{i}' for i in range(160, 169)]
TB = 172
def T(i): return f'v{TB + i}'
def TR(i, n): return f'v[{TB + i}:{TB + i + n - 1}]'
def vr(b, n): return f'v[{b}:{b + n - 1}]'
def ar(b, n): return f'a[{b}:{b + n - 1}]'
AK, AWQ, AWR = 0, 32, 48
NAGPR = 80

a = Asm()
stubs = []
_ts = [0]
TSN = {}

def ts(name):
    if not DEBUG_TS: return
    k = _ts[0]; _ts[0] += 1
    TSN[k] = name
    a(f'''s_memrealtime s[94:95]
          s_waitcnt lgkmcnt(0)
          v_writelane_b32 {vTS}, s94, {k}''')

def lstore(ins):
    slow, back = a.newlabel('slow'), a.newlabel('back')
    a(f's_cmp_eq_u32 {sMODE}, 0')
    a(f's_cbranch_scc1 {slow}')
    a(ins)
    a(f'{back}:')
    stubs.append(f'{slow}:\n {ins} sc1\n s_nop 1\n s_branch {back}')

def chk(regs, tmp):
    regs = list(regs)
    if len(regs) == 1:
        a(f'v_cmp_ne_u32_sdwa vcc, {regs[0]}, {sTAG} src0_sel:BYTE_0 src1_sel:BYTE_0')
        return
    parts = []
    for i in range(0, len(regs), 2):
        t = tmp[i // 2]
        a(f'v_bitop3_b32 {t}, {regs[i]}, {regs[i + 1]}, {sTAG} bitop3:0x7e')
        parts.append(t)
    while len(parts) > 1:
        if len(parts) >= 3:
            a(f'v_or3_b32 {parts[0]}, {parts[0]}, {parts[1]}, {parts[2]}')
            parts = [parts[0]] + parts[3:]
        else:
            a(f'v_or_b32 {parts[0]}, {parts[0]}, {parts[1]}')
            parts = [parts[0]]
    a(f'v_cmp_ne_u32_sdwa vcc, {parts[0]}, 0 src0_sel:BYTE_0 src1_sel:DWORD')

def poll(loads, regs, tmp, sleep=0):
    L = a.newlabel('poll')
    a(f'{L}:')
    for ld in loads: a(ld)
    a(f's_sub_u32 {sCNT}, {sCNT}, 1')
    a('s_cbranch_scc1 L_bail')
    if sleep: a(f's_sleep {sleep}')
    a('s_waitcnt vmcnt(0)')
    chk(regs, tmp)
    a(f's_cbranch_vccnz {L}')

def tagv(dst, src): a(f'v_bfi_b32 {dst}, {sFF}, {vTAG}, {src}')

def red4(t0, t1, t2, t3, rors):
    a(f'''v_permlane32_swap_b32 {t0}, {t2}
          v_permlane32_swap_b32 {t1}, {t3}
          v_add_f32 {t0}, {t0}, {t2}
          v_add_f32 {t1}, {t1}, {t3}
          v_permlane16_swap_b32 {t0}, {t1}
          v_add_f32 {t0}, {t0}, {t1}''')
    for r in rors: a(f'v_add_f32_dpp {t0}, {t0}, {t0} row_ror:{r} row_mask:0xf bank_mask:0xf')

def allred_rows(op, x, tmp):
    a(f'''v_mov_b32 {tmp}, {x}
          v_permlane16_swap_b32 {tmp}, {x}
          {op} {x}, {x}, {tmp}
          v_mov_b32 {tmp}, {x}
          v_permlane32_swap_b32 {tmp}, {x}
          {op} {x}, {x}, {tmp}''')

def sf(addr):
    poll([f'buffer_load_dwordx4 {TR(0,4)}, {addr}, {rWS}, 0 offen sc1'], [T(i) for i in range(4)], [T(4), T(5)])
    red4(T(0), T(1), T(2), T(3), [8])
    a(f'''v_cvt_pk_bf16_f32 {T(0)}, {T(0)}, {T(0)}
          v_and_b32 {T(0)}, {sHIM}, {T(0)}
          v_add_f32 {T(0)}, {T(0)}, {vXRES}
          v_cvt_pk_bf16_f32 {T(0)}, {T(0)}, {T(0)}
          v_and_b32 {vXN}, {sHIM}, {T(0)}''')

def slice_stats(addr, t0, t1, t2):
    a(f'''v_mul_f32 {t1}, {vXN}, {vXN}
          v_add_f32_dpp {t0}, {vXN}, {vXN} row_ror:1 row_mask:0xf bank_mask:0xf
          v_add_f32_dpp {t1}, {t1}, {t1} row_ror:1 row_mask:0xf bank_mask:0xf
          v_add_f32_dpp {t0}, {t0}, {t0} row_ror:2 row_mask:0xf bank_mask:0xf
          v_add_f32_dpp {t1}, {t1}, {t1} row_ror:2 row_mask:0xf bank_mask:0xf
          v_add_f32_dpp {t0}, {t0}, {t0} row_ror:4 row_mask:0xf bank_mask:0xf
          v_add_f32_dpp {t1}, {t1}, {t1} row_ror:4 row_mask:0xf bank_mask:0xf
          v_permlane32_swap_b32 {t0}, {t1}
          v_add_f32 {t0}, {t0}, {t1}
          v_mov_b32 {t2}, {t0}
          v_permlane16_swap_b32 {t2}, {t0}
          v_add_f32 {t0}, {t0}, {t2}''')
    tagv(t0, t0)
    a('s_mov_b32 exec_lo, 3\n s_mov_b32 exec_hi, 3')
    lstore(f'buffer_store_dword {t0}, {addr}, {rWS}, 0 offen')
    a('s_mov_b64 exec, -1')

def ln_math(s1, s2, t):
    for r in (8, 4, 2, 1):
        a(f'v_add_f32_dpp {s1}, {s1}, {s1} row_ror:{r} row_mask:0xf bank_mask:0xf')
        a(f'v_add_f32_dpp {s2}, {s2}, {s2} row_ror:{r} row_mask:0xf bank_mask:0xf')
    a(f'''v_mul_f32 {s1}, {hex(f32(1.0 / 512))}, {s1}
          v_mul_f32 {s2}, {hex(f32(1.0 / 512))}, {s2}
          v_fma_f32 {s2}, -{s1}, {s1}, {s2}
          v_max_f32 {s2}, 0, {s2}
          v_cvt_pk_bf16_f32 {t}, {s1}, {s2}
          v_and_b32 {s2}, {sHIM}, {t}
          v_lshlrev_b32 {vMU}, 16, {t}
          v_add_f32 {s2}, {hex(f32(1e-5))}, {s2}
          v_cvt_pk_bf16_f32 {s2}, {s2}, {s2}
          v_and_b32 {s2}, {sHIM}, {s2}
          v_sqrt_f32 {s2}, {s2}
          v_cvt_pk_bf16_f32 {s2}, {s2}, {s2}
          v_and_b32 {s2}, {sHIM}, {s2}
          v_rcp_f32 {vRS}, {s2}''')

def srd(base, lo, hi, off_lo, nrec, off_hi=None):
    a(f's_add_u32 s{base}, {lo}, {off_lo}')
    a(f's_addc_u32 s{base+1}, {hi}, {off_hi if off_hi else 0}')
    a(f's_mov_b32 s{base+2}, {nrec}')
    a(f's_mov_b32 s{base+3}, 0x20000')

a.raw(open(f'cdna_kernels/{NAME}.s.ref').read().split('; Override launch geometry')[0].rstrip())
a.raw(f'; @launch grid=(256,1,1) block=(256,1,1) lds={LDS_SIZE}')
a.raw(f'''; Persistent kernel: one workgroup per CU keeps its share of K, V and all weights on chip for both layers;
.amdgcn_target "amdgcn-amd-amdhsa--gfx950"
.text
.globl {NAME}_kernel
.p2align 8
.type {NAME}_kernel,@function
{NAME}_kernel:''')
a('L_start:')
a(f'''s_cmp_ge_u32 s2, 256
      s_cbranch_scc1 L_end
      s_load_dwordx16 s[68:83], s[0:1], 0
      s_load_dwordx8 s[84:91], s[0:1], 64
      v_lshrrev_b32 v6, 6, v0
      v_and_b32 {vL}, 63, v0
      s_and_b32 {sG}, s2, 7
      s_lshr_b32 {sJ}, s2, 3
      v_readfirstlane_b32 {sW}, v6
      s_and_b32 {sI}, {sJ}, 15
      s_lshr_b32 {sKAP}, {sI}, 2
      s_lshr_b32 {sROLE}, {sJ}, 4
      s_and_b32 {sCG}, {sJ}, 3
      s_lshl_b32 s3, {sROLE}, 2
      s_or_b32 {sCG}, {sCG}, s3
      s_getreg_b32 {sXCC}, hwreg(HW_REG_XCC_ID)
      v_and_b32 {vN}, 15, {vL}
      v_lshrrev_b32 {vG4}, 4, {vL}
      v_and_b32 v6, 7, {vL}
      v_lshl_add_u32 {vCOL}, v6, 2, {vG4}
      s_mov_b32 {sLAYER}, 0
      s_mov_b32 {sMODE}, 0
      s_mov_b32 {sCNT}, 400000
      s_movk_i32 {sFF}, 0xff
      s_mov_b32 {sHIM}, 0xffff0000
      s_movk_i32 {sC4K}, 0x1000
      s_movk_i32 {sC8K}, 0x2000
      s_movk_i32 {sC12K}, 0x3000''')
a(f'''s_getpc_b64 s[44:45]
L_pc:
      s_sub_u32 s44, s44, L_pc-L_start
      s_subb_u32 s45, s45, 0
      s_mov_b32 s46, L_codeend-L_start
      s_mov_b32 s47, 0x20000
      v_lshlrev_b32 v7, 7, v0''')
if DEBUG_TS: a(f'v_mov_b32 {vTS}, 0')
ts('start')
a('s_waitcnt lgkmcnt(0)')
a(f's_load_dword {sEP}, s[90:91], 0')
srd(8, 's68', 's69', 0, 1024)
a(f'''s_lshl_b32 s3, {sKAP}, 20
      s_lshl_b32 s92, {sG}, 10
      s_add_u32 s3, s3, s92
      s_lshl_b32 s92, {sCG}, 7
      s_add_u32 s3, s3, s92''')
srd(20, 's74', 's75', 's3', 127 * 8192 + 128)
a(f'''s_lshl_b32 s3, {sKAP}, 7
      s_lshl_b32 s92, {sW}, 5
      s_add_u32 s3, s3, s92
      v_add_lshl_u32 {A['aOUT']}, s3, {vCOL}, 1
      buffer_load_ushort {vXN}, {A['aOUT']}, {rX}, 0 offen''')
a(f'''v_lshrrev_b32 {T(0)}, 3, {vL}
      v_lshlrev_b32 {T(0)}, 13, {T(0)}
      v_and_b32 {T(1)}, 7, {vL}
      v_lshl_add_u32 {T(0)}, {T(1)}, 4, {T(0)}
      s_lshl_b32 s92, {sW}, 18
      s_lshl_b32 s93, {sW}, 12''')
for u in range(4):
    a(f's_add_u32 m0, s93, {WQST + u * 1024}')
    a(f'buffer_load_dwordx4 {T(0)}, {rWQ}, s92 offen {LDFL} lds')
    if u < 3: a(f's_add_u32 s92, s92, 0x10000')
a(f'''s_lshl_b32 s3, {sJ}, 15
      s_add_u32 s3, s3, {61440 * 256}
      s_lshl_b32 s92, {sG}, 24
      s_add_u32 s3, s3, s92''')
srd(12, 's70', 's71', 's3', 32768)
srd(16, 's72', 's73', 's3', 32768)
a(f'''v_xor_b32 {T(1)}, {vN}, {vG4}
      v_lshlrev_b32 {T(1)}, 4, {T(1)}
      v_lshl_add_u32 {T(1)}, {vG4}, 8, {T(1)}
      v_xor_b32 {T(2)}, 64, {T(1)}
      v_xor_b32 {T(3)}, 128, {T(1)}
      v_xor_b32 {T(4)}, 192, {T(1)}
      s_lshl_b32 s92, {sW}, 13''')
for hh in range(2):
    a(f's_add_u32 m0, s92, {KST + hh * 4096}')
    if hh: a(f's_add_u32 s92, s92, 4096')
    for u in range(4):
        a(f'buffer_load_dwordx4 {T(1 + u)}, {rK}, s92 offen offset:{u * 1024} {LDFL} lds')
a(f'buffer_load_dword v6, v7, {rCODE}, 0 offen')
NPRE = 1
srd(36, 's90', 's91', 0, WS_SIZE)
srd(40, 's86', 's87', 0, 1024)
a(f'''s_cmp_lg_u32 {sROLE}, 0
      s_cbranch_scc1 L_srd1''')
a(f'''s_lshl_b32 s3, {sG}, 19
      s_lshl_b32 s92, {sI}, 15
      s_add_u32 s3, s3, s92''')
srd(24, 's76', 's77', 's3', 32768)
srd(28, 's84', 's85', 0, 0)
srd(32, 's82', 's83', 0, 0)
a('s_branch L_srd2')
a('L_srd1:')
a(f'''s_mul_i32 s3, {sI}, {32 * 3584}
      s_mul_i32 s92, {sG}, 448
      s_add_u32 s3, s3, s92''')
srd(24, 's80', 's81', 's3', 31 * 3584 + 448)
a(f'''s_mul_i32 s92, {sG}, 14
      s_add_u32 s92, s92, {sI}
      s_lshl_b32 s3, s92, 14''')
srd(28, 's84', 's85', 's3', 16384)
a('s_lshl_b32 s3, s92, 5')
srd(32, 's82', 's83', 's3', 32)
a(f'''s_cmp_lt_u32 {sI}, 14
      s_cbranch_scc1 L_srd2
      s_mov_b32 s28, s84
      s_mov_b32 s29, s85
      s_mov_b32 s30, 0
      s_mov_b32 s32, s82
      s_mov_b32 s33, s83
      s_mov_b32 s34, 0''')
a('L_srd2:')
a(f'''s_mov_b32 {sSLO}, 0x05040100
      s_mov_b32 {sSHI}, 0x07060302
      s_mov_b32 {sCEXP}, {hex(f32(128 ** -0.5 * 1.4426950408889634))}
      s_mov_b32 {sNL2E}, {hex(f32(-1.4426950408889634))}
      s_mov_b32 {sCSD}, {CS - H1}
      s_mov_b32 {sCS1D}, {CS1 - H3B}
      v_mov_b32 v{ONES}, 0x3f803f80
      v_mov_b32 v{ONES+1}, 0x3f803f80
      v_mov_b32 v{ONES+2}, 0x3f803f80
      v_mov_b32 v{ONES+3}, 0x3f803f80''')

def sexpr(dst, terms, const):
    a(f's_mov_b32 {dst}, {const}')
    for reg, sh in terms:
        a(f's_lshl_b32 s3, {reg}, {sh}')
        a(f's_add_u32 {dst}, {dst}, s3')
def vaddr(name, sterms, const, vterms):
    sexpr('s92', sterms, const)
    first = True
    for reg, sh in vterms:
        if first: a(f'v_lshl_add_u32 {A[name]}, {reg}, {sh}, s92'); first = False
        else: a(f'v_lshl_add_u32 {A[name]}, {reg}, {sh}, {A[name]}')
    if first: a(f'v_mov_b32 {A[name]}, s92')
vL31, vL5, vL1, vLh, vN2 = T(8), T(9), T(10), T(11), T(12)
a(f'''v_and_b32 {vL31}, 31, {vL}
      v_lshrrev_b32 {vL5}, 5, {vL}
      v_and_b32 {vL1}, 1, {vL}
      v_lshrrev_b32 {vLh}, 1, {vL}
      v_lshrrev_b32 {vN2}, 2, {vN}''')
vaddr('aXW', [(sW, 6)], XB, [(vCOL, 1)])
vaddr('aXR', [], XB, [(vG4, 4)])
vaddr('aH1W', [(sG, 13), (sKAP, 11), (sCG, 8), (sW, 6)], H1, [(vN, 2)])
vaddr('aSTW', [(sG, 8), (sKAP, 6), (sW, 4)], ST1, [(vL5, 2), (vL1, 3)])
vaddr('aST2W', [(sG, 8), (sI, 4)], ST2, [(vL5, 2), (vL1, 3)])
vaddr('aH1R', [(sG, 13), (sW, 9)], H1, [(vL5, 12), (vL31, 4)])
vaddr('aSTR', [(sG, 8)], ST1, [(vN, 4)])
vaddr('aQW', [(sW, 8)], QB, [(vL31, 3), (vL5, 2)])
vaddr('aQR', [], QB, [(vN2, 8), (vG4, 4)])
vaddr('aOW', [(sW, 11)], OB, [(vG4, 9), (vN, 5)])
vaddr('aMW', [(sW, 2)], ML, [(vN2, 5)])
vaddr('aLW', [(sW, 2)], ML + 16, [(vG4, 5)])
vaddr('aOR', [(sW, 9)], OB, [(vL, 3)])
vaddr('aMLR', [(sW, 5)], ML, [])
vaddr('aH2AW', [(sG, 16), (sW, 14), (sJ, 7)], H2A, [(vG4, 12), (vN, 3)])
vaddr('aH2ASW', [(sG, 11), (sW, 9), (sJ, 4)], H2AS, [])
vaddr('aH2AR', [(sG, 16), (sI, 12), (sW, 5)], H2A, [(vLh, 7), (vL1, 4)])
vaddr('aH2ASR', [(sG, 11), (sKAP, 9)], H2AS, [(vLh, 4)])
vaddr('aO2W', [(sW, 4)], O2, [(vL1, 3), (vG4, 1)])
vaddr('aO2R', [], O2, [(vG4, 4)])
vaddr('aPW', [(sROLE, 18), (sG, 15), (sW, 13), (sI, 7)], H2B, [(vG4, 11), (vN, 3)])
vaddr('aRR', [(sROLE, 18), (sG, 15), (sI, 11)], H2B, [(vL, 4)])
assert H4A - H2B == 1 << 18 and H4B - H3 == 1 << 14
a(f'''v_and_b32 {T(13)}, 1, {vCOL}
      v_lshlrev_b32 {T(13)}, 4, {T(13)}
      v_lshrrev_b32 {T(14)}, 1, {vCOL}
      v_add_u32 {T(13)}, {T(13)}, {T(14)}
      s_cmp_lg_u32 {sROLE}, 0
      s_cselect_b64 vcc, -1, 0
      v_cndmask_b32 {T(13)}, {T(13)}, {vCOL}, vcc''')
vaddr('aRW', [(sROLE, 14), (sI, 10), (sG, 7)], H3, [(T(13), 2)])
vaddr('aSFH', [(sI, 10)], H3, [(vL, 4)])
vaddr('aSFQ', [(sKAP, 12), (sW, 10)], H4B, [(vL, 4)])
vaddr('aX1W', [(sG, 11), (sI, 7)], X1, [(vCOL, 2)])
vaddr('aX1R', [(sG, 11), (sKAP, 9), (sW, 7)], X1, [(vCOL, 2)])
vaddr('aHPW', [(sW, 6)], HP, [(vCOL, 1)])
vaddr('aHPR', [(sW, 6)], HP, [(vG4, 4)])
a(f's_and_b32 s93, {sI}, 3')
vaddr('aH3BW', [(sG, 14), (sW, 10), (sKAP, 8), ('s93', 2)], H3B, [(vG4, 12), (vN, 4)])
vaddr('aH3BR', [(sG, 14), (sI, 10)], H3B, [(vL, 4)])
a(f'''s_waitcnt lgkmcnt(0)
      s_add_u32 {sTAG}, {sEP}, 1
      s_and_b32 {sTAG}, {sTAG}, 0xff
      v_mov_b32 {vTAG}, {sTAG}''')
a(f'''s_and_b32 {sXCC}, {sXCC}, 0xff
      s_lshl_b32 {sXCC}, {sXCC}, 8
      s_or_b32 {sXCC}, {sXCC}, {sTAG}
      v_mov_b32 {T(16)}, {sXCC}
      v_mov_b32 {T(17)}, {sXCC}
      v_mov_b32 {T(18)}, {sXCC}
      v_mov_b32 {T(19)}, {sXCC}''')
sexpr('s92', [(sG, 9), (sJ, 4)], XC)
a(f'''v_mov_b32 {T(20)}, s92
      s_mov_b64 exec, 1
      buffer_store_dwordx4 {TR(16,4)}, {T(20)}, {rWS}, 0 offen sc1
      s_mov_b64 exec, -1''')
a(f'''s_waitcnt vmcnt({4 + 8 + NPRE + 1})
      v_lshlrev_b32 {vXN}, 16, {vXN}
      s_branch L_qmid''')

a('L_qfront:')
ts('qf_start')
poll([f'buffer_load_dword {vXRES}, {A["aX1R"]}, {rWS}, 0 offen sc1'], [vXRES], [], sleep=1)
a(f'v_and_b32 {vXRES}, {sHIM}, {vXRES}')
sf(A['aSFQ'])
a(f'''s_cmp_eq_u32 {sLAYER}, 2
      s_cbranch_scc1 L_final''')
a(f'''s_add_u32 {sTAG}, {sTAG}, 1
      s_and_b32 {sTAG}, {sTAG}, 0xff
      v_mov_b32 {vTAG}, {sTAG}''')
a('L_qmid:')
ts('qmid')
a(f'''ds_write_b16_d16_hi {A['aXW']}, {vXN}
      s_cmp_lg_u32 {sLAYER}, 0
      s_cbranch_scc1 L_q1
      s_waitcnt vmcnt({8 + NPRE + 1}) lgkmcnt(0)
      s_barrier''')
a(f'''v_lshrrev_b32 {T(0)}, 2, {vN}
      v_lshl_add_u32 {T(0)}, {vG4}, 3, {T(0)}
      v_lshlrev_b32 {T(0)}, 7, {T(0)}
      v_and_b32 {T(1)}, 3, {vN}
      v_lshl_add_u32 {T(0)}, {T(1)}, 3, {T(0)}
      s_lshl_b32 s3, {sW}, 5
      v_add_u32 {T(0)}, s3, {T(0)}''')
for s in range(4):
    for h in range(2):
        a(f'ds_read_b64_tr_b16 {ar(AWQ + 4 * s + 2 * h, 2)}, {T(0)} offset:{WQST + s * 4096 + h * 512}')
a('s_waitcnt lgkmcnt(0)')
for s in range(4):
    a(f'v_mfma_f32_16x16x32_bf16 {TR(24,4)}, {vr(ONES,4)}, {ar(AWQ + 4 * s, 4)}, {"0" if s == 0 else TR(24,4)}')
tagv(T(24), T(24))
a(f'''s_mov_b64 exec, 0xffff
      buffer_store_dword {T(24)}, {A['aH1W']}, {rWS}, {sCSD} offen sc1
      s_mov_b64 exec, -1
      s_branch L_q2''')
a('L_q1:')
a('''s_waitcnt lgkmcnt(0)
     s_barrier''')
a('L_q2:')
for s in range(4):
    a(f'ds_read_b128 {TR(4 * s, 4)}, {A["aXR"]} offset:{s * 64}')
a(f'''s_and_b32 s3, {sI}, 3
      s_lshl_b32 s3, s3, 6
      s_add_u32 s3, s3, {XB}
      v_lshl_add_u32 {T(20)}, {vCOL}, 1, s3
      ds_read_u16 {vXRES}, {T(20)}
      s_cmp_lg_u32 {sCG}, 0
      s_cbranch_scc1 L_q3''')
slice_stats(A['aSTW'], T(16), T(17), T(18))
a('L_q3:')
for s in range(4):
    a(f's_waitcnt lgkmcnt({4 - s})')
    a(f'v_mfma_f32_16x16x32_bf16 {TR(24,4)}, {TR(4 * s, 4)}, {ar(AWQ + 4 * s, 4)}, {"0" if s == 0 else TR(24,4)}')
a('s_mov_b64 exec, 0xffff')
tagv(T(24), T(24))
lstore(f'buffer_store_dword {T(24)}, {A["aH1W"]}, {rWS}, 0 offen')
a(f'''s_mov_b64 exec, -1
      s_waitcnt lgkmcnt(0)
      v_lshlrev_b32 {vXRES}, 16, {vXRES}''')
ts('q_pub')

LD_ST = lambda off: f'buffer_load_dwordx4 {TR(8,4)}, {A["aSTR"]}, {rWS}, 0 offen offset:{off} sc1'
LD_V0 = f'buffer_load_dwordx4 {TR(0,4)}, {A["aH1R"]}, {rWS}, 0 offen sc1'
LD_V1 = f'buffer_load_dwordx4 {TR(4,4)}, {A["aH1R"]}, {rWS}, 0 offen offset:2048 sc1'
a(f'''s_cmp_lg_u32 {sLAYER}, 0
      s_cbranch_scc1 L_af1''')
a(f'''v_lshlrev_b32 {T(40)}, 10, {vG4}
      v_lshl_add_u32 {T(40)}, {vN}, 4, {T(40)}
      s_lshl_b32 s92, {sW}, 13
      s_add_u32 s93, s92, 4096''')
for e in range(8):
    t, r = e >> 2, e & 3
    a(f'buffer_load_dwordx4 {vr(VRAW + 4 * e, 4)}, {T(40)}, {rV}, {"s93" if t else "s92"} offen offset:{r * 256} {LDFL}')
sexpr('s92', [(sG, 9)], XC)
a(f'''v_and_b32 {T(41)}, 31, {vL}
      v_lshl_add_u32 {T(41)}, {T(41)}, 4, s92''')
SET0 = [f'buffer_load_dwordx4 {TR(12,4)}, {T(41)}, {rWS}, 0 offen sc1',
        LD_ST(0),
        f'buffer_load_dwordx4 {TR(16,4)}, {A["aH1R"]}, {rWS}, {sCSD} offen sc1',
        f'buffer_load_dwordx4 {TR(20,4)}, {A["aH1R"]}, {rWS}, {sCSD} offen offset:2048 sc1',
        LD_V0, LD_V1]
for ld in SET0: a(ld)
a(f'''v_xor_b32 {T(42)}, {vN}, {vG4}
      v_lshlrev_b32 {T(42)}, 4, {T(42)}
      v_lshl_add_u32 {T(42)}, {vN}, 8, {T(42)}
      s_lshl_b32 s3, {sW}, 13
      s_add_u32 s3, s3, {KST}
      v_add_u32 {T(42)}, s3, {T(42)}
      v_xor_b32 {T(43)}, 64, {T(42)}
      v_xor_b32 {T(44)}, 128, {T(42)}
      v_xor_b32 {T(45)}, 192, {T(42)}
      s_waitcnt vmcnt(14)''')
ts('k_landed')
for t in range(2):
    for s in range(4):
        a(f'ds_read_b128 {ar(AK + (t * 4 + s) * 4, 4)}, {T(42 + s)} offset:{t * 4096}')
a(f'''s_cmp_lg_u32 {sROLE}, 0
      s_cbranch_scc1 L_rw1''')
a(f'''v_lshlrev_b32 {T(46)}, 10, {vG4}
      v_lshl_add_u32 {T(46)}, {vN}, 4, {T(46)}
      s_lshl_b32 s92, {sW}, 8
      s_lshl_b32 s93, {sW}, 13''')
for u in range(8):
    a(f's_add_u32 m0, s93, {RST + u * 1024}')
    a(f'buffer_load_dwordx4 {T(46)}, {rWR}, s92 offen {LDFL} lds')
    if u < 7: a(f's_add_u32 s92, s92, 4096')
a('''s_waitcnt vmcnt(8)
     s_branch L_rw2''')
a('L_rw1:')
a(f'''s_lshl_b32 s3, {sW}, 6
      v_add_u32 {T(46)}, s3, {vL}
      s_lshl_b32 s93, {sW}, 10
      s_movk_i32 s92, 3584''')
for u in range(4):
    a(f'''v_mul_u32_u24 {T(47)}, 2341, {T(46)}
          v_lshrrev_b32 {T(47)}, 16, {T(47)}
          v_mul_u32_u24 {T(48)}, 28, {T(47)}
          v_sub_u32 {T(48)}, {T(46)}, {T(48)}
          v_lshlrev_b32 {T(48)}, 4, {T(48)}
          v_mad_u32_u24 {T(48)}, {T(47)}, s92, {T(48)}
          s_add_u32 m0, s93, {RST + u * 4096}
          v_add_u32 {T(46)}, 256, {T(46)}
          buffer_load_dwordx4 {T(48)}, {rWR}, 0 offen {LDFL} lds''')
a(f'''s_lshl_b32 s3, {sW}, 8
      v_lshl_add_u32 {T(47)}, {vL}, 2, s3''')
for c in range(16):
    so = ['0', sC4K, sC8K, sC12K][c >> 2]
    a(f'buffer_load_dword v{W2R + c}, {T(47)}, {rW2}, {so} offen offset:{(c & 3) * 1024} {LDFL}')
a(f'''v_lshlrev_b32 {T(48)}, 1, {vN}
      buffer_load_ushort {vB1}, {T(48)}, {rB1}, 0 offen
      s_waitcnt vmcnt(21)''')
a('L_rw2:')
chk([T(i) for i in range(24)], [T(28 + i) for i in range(12)])
a('s_cbranch_vccz L_af0ok')
ts('af0_retry')
poll(SET0, [T(i) for i in range(24)], [T(28 + i) for i in range(12)])
a('L_af0ok:')
a(f'''v_cmp_ne_u32 vcc, {sXCC}, {T(12)}
      s_cmp_eq_u64 vcc, 0
      s_cselect_b32 {sMODE}, 1, 0''')
for k in range(4): a(f'v_add_f32 {T(16 + k)}, {T(16 + k)}, {T(20 + k)}')
a(f'''v_permlane32_swap_b32 {T(16)}, {T(18)}
      v_permlane32_swap_b32 {T(17)}, {T(19)}
      v_add_f32 {vCS0}, {T(16)}, {T(18)}
      v_add_f32 {vCS1}, {T(17)}, {T(19)}''')
ln_math(T(8), T(9), T(10))
a('s_branch L_aft')
a('L_af1:')
poll([LD_ST(0), LD_V0, LD_V1], [T(8 + i) for i in range(4)], [T(28), T(29)])
a(LD_V0); a(LD_V1)
ln_math(T(8), T(9), T(10))
a('s_waitcnt vmcnt(0)')
chk([T(i) for i in range(8)], [T(28 + i) for i in range(4)])
a('s_cbranch_vccz L_aft')
poll([LD_V0, LD_V1], [T(i) for i in range(8)], [T(28 + i) for i in range(4)])
a('L_aft:')
ts('q_got')
for k in range(4): a(f'v_add_f32 {T(k)}, {T(k)}, {T(4 + k)}')
a(f'''v_permlane32_swap_b32 {T(0)}, {T(2)}
      v_permlane32_swap_b32 {T(1)}, {T(3)}
      v_add_f32 {T(0)}, {T(0)}, {T(2)}
      v_add_f32 {T(1)}, {T(1)}, {T(3)}
      v_fma_f32 {T(0)}, -{vMU}, {vCS0}, {T(0)}
      v_fma_f32 {T(1)}, -{vMU}, {vCS1}, {T(1)}
      v_mul_f32 {T(0)}, {T(0)}, {vRS}
      v_mul_f32 {T(1)}, {T(1)}, {vRS}
      v_cvt_pk_bf16_f32 {T(0)}, {T(0)}, {T(1)}
      ds_write_b32 {A['aQW']}, {T(0)}
      s_cmp_lg_u32 {sLAYER}, 0
      s_cbranch_scc1 L_a1''')
for jd in range(8):
    for e in range(0, 8, 2):
        a(f'v_perm_b32 v{VOP + 4 * jd + e // 2}, v{VRAW + 4 * (e + 1) + jd // 2}, v{VRAW + 4 * e + jd // 2}, {sSHI if jd & 1 else sSLO}')
a('L_a1:')
a('''s_waitcnt lgkmcnt(0)
     s_barrier''')
for s in range(4): a(f'ds_read_b128 {TR(4 * s, 4)}, {A["aQR"]} offset:{s * 64}')
D0, D1 = 16, 20
for s in range(4):
    a(f's_waitcnt lgkmcnt({3 - s})')
    for t in range(2):
        d = TR(D0 + 4 * t, 4)
        a(f'v_mfma_f32_16x16x32_bf16 {d}, {ar(AK + (t * 4 + s) * 4, 4)}, {TR(4 * s, 4)}, {"0" if s == 0 else d}')
mx, tmp = T(24), T(25)
a(f'''v_max3_f32 {mx}, {T(16)}, {T(17)}, {T(18)}
      v_max3_f32 {tmp}, {T(20)}, {T(21)}, {T(22)}
      v_max3_f32 {mx}, {mx}, {T(19)}, {T(23)}
      v_max_f32 {mx}, {mx}, {tmp}''')
allred_rows('v_max_f32', mx, tmp)
a(f'v_mul_f32 {mx}, {sCEXP}, {mx}')
for k in range(8): a(f'v_fma_f32 {T(16 + k)}, {T(16 + k)}, {sCEXP}, -{mx}')
a(f'ds_write_b32 {A["aMW"]}, {mx}')
for k in range(8): a(f'v_exp_f32 {T(16 + k)}, {T(16 + k)}')
for k in range(4): a(f'v_cvt_pk_bf16_f32 {T(28 + k)}, {T(16 + 2 * k)}, {T(17 + 2 * k)}')
for jd in range(8):
    a(f'v_mfma_f32_16x16x32_bf16 {vr(VRAW + 4 * jd, 4)}, {TR(28,4)}, {vr(VOP + 4 * jd, 4)}, 0')
a(f'v_mfma_f32_16x16x32_bf16 {vr(VRAW + 32, 4)}, {TR(28,4)}, {vr(ONES, 4)}, 0')
for jd in range(0, 8, 2):
    a(f'ds_write2_b32 {A["aOW"]}, v{VRAW + 4 * jd}, v{VRAW + 4 * jd + 4} offset0:{jd} offset1:{jd + 1}')
a(f'''ds_write_b32 {A['aLW']}, v{VRAW + 32}
      s_waitcnt lgkmcnt(0)
      s_barrier
      ds_read_b128 {TR(0,4)}, {A['aMLR']}
      ds_read_b128 {TR(4,4)}, {A['aMLR']} offset:16''')
for src in range(4): a(f'ds_read_b64 {TR(8 + 2 * src, 2)}, {A["aOR"]} offset:{src * 2048}')
a(f'''s_waitcnt lgkmcnt(5)
      v_max3_f32 {T(16)}, {T(0)}, {T(1)}, {T(2)}
      v_max_f32 {T(16)}, {T(16)}, {T(3)}''')
tagv(T(16), T(16))
for k in range(4): a(f'v_sub_f32 {T(k)}, {T(k)}, {T(16)}')
for k in range(4): a(f'v_exp_f32 {T(k)}, {T(k)}')
a(f'''s_waitcnt lgkmcnt(0)
      v_mul_f32 {T(20)}, {T(0)}, {T(8)}
      v_mul_f32 {T(21)}, {T(0)}, {T(9)}
      v_mul_f32 {T(17)}, {T(0)}, {T(4)}''')
for k in range(1, 4):
    a(f'''v_fmac_f32 {T(20)}, {T(k)}, {T(8 + 2 * k)}
          v_fmac_f32 {T(21)}, {T(k)}, {T(9 + 2 * k)}
          v_fmac_f32 {T(17)}, {T(k)}, {T(4 + k)}''')
tagv(T(20), T(20)); tagv(T(21), T(21))
lstore(f'buffer_store_dwordx2 {TR(20,2)}, {A["aH2AW"]}, {rWS}, 0 offen')
tagv(T(17), T(17))
a(f'''v_mov_b32 {T(18)}, {T(16)}
      v_mov_b32 {T(19)}, {T(17)}
      s_mov_b64 exec, 1''')
lstore(f'buffer_store_dwordx4 {TR(16,4)}, {A["aH2ASW"]}, {rWS}, 0 offen')
a('s_mov_b64 exec, -1')
ts('att_pub')
a(f'''s_cmp_lg_u32 {sROLE}, 0
      s_cbranch_scc1 L_role1''')

LDO = [f'buffer_load_dwordx4 {TR(4,4)}, {A["aH2ASR"]}, {rWS}, 0 offen sc1',
       f'buffer_load_dwordx4 {TR(0,4)}, {A["aH2AR"]}, {rWS}, 0 offen sc1']
a(f'''s_cmp_lg_u32 {sLAYER}, 0
      s_cbranch_scc1 L_o1''')
a(f'''v_lshrrev_b32 {T(40)}, 2, {vN}
      v_lshl_add_u32 {T(40)}, {vG4}, 3, {T(40)}
      v_lshlrev_b32 {T(40)}, 8, {T(40)}
      v_and_b32 {T(41)}, 3, {vN}
      v_lshl_add_u32 {T(40)}, {T(41)}, 3, {T(40)}
      s_lshl_b32 s3, {sW}, 13
      s_add_u32 s3, s3, {RST}
      v_add_u32 {T(40)}, s3, {T(40)}
      s_waitcnt vmcnt(2)''')
for t in range(8):
    for h in range(2):
        a(f'ds_read_b64_tr_b16 {ar(AWR + 4 * t + 2 * h, 2)}, {T(40)} offset:{h * 1024 + t * 32}')
a('L_o1:')
poll(LDO, [T(i) for i in range(8)], [T(28 + i) for i in range(4)])
ts('o_got')
a(f'v_max_f32_dpp {T(8)}, {T(4)}, {T(4)} row_ror:8 row_mask:0xf bank_mask:0xf')
for r in (4, 2): a(f'v_max_f32_dpp {T(8)}, {T(8)}, {T(8)} row_ror:{r} row_mask:0xf bank_mask:0xf')
allred_rows('v_max_f32', T(8), T(9))
a(f'''v_sub_f32 {T(8)}, {T(4)}, {T(8)}
      v_exp_f32 {T(8)}, {T(8)}
      s_nop 0
      v_mul_f32 {T(5)}, {T(5)}, {T(8)}''')
for k in range(4): a(f'v_mul_f32 {T(k)}, {T(k)}, {T(8)}')
for r in (8, 4, 2): a(f'v_add_f32_dpp {T(5)}, {T(5)}, {T(5)} row_ror:{r} row_mask:0xf bank_mask:0xf')
allred_rows('v_add_f32', T(5), T(9))
a(f'v_rcp_f32 {T(5)}, {T(5)}')
red4(T(0), T(1), T(2), T(3), [8, 4, 2])
a(f'''v_mul_f32 {T(0)}, {T(0)}, {T(5)}
      v_cvt_pk_bf16_f32 {T(0)}, {T(0)}, {T(0)}
      ds_write_b16 {A['aO2W']}, {T(0)}
      s_waitcnt lgkmcnt(0)
      s_barrier
      ds_read_b128 {TR(0,4)}, {A['aO2R']}
      s_waitcnt lgkmcnt(0)''')
for t in range(8):
    a(f'v_mfma_f32_16x16x32_bf16 {TR(8 + 4 * t, 4)}, {TR(0,4)}, {ar(AWR + 4 * t, 4)}, 0')
for g in range(1, 4):
    for u in range(2):
        a(f'v_mov_b32_dpp {T(8 + 4 * u)}, {T(8 + 4 * (2 * g + u))} quad_perm:[0,1,2,3] row_mask:{hex(1 << g)} bank_mask:0xf')
tagv(T(4), T(8)); tagv(T(5), T(12))
lstore(f'buffer_store_dwordx2 {TR(4,2)}, {A["aPW"]}, {rWS}, 0 offen')
ts('o_pub')
a('s_branch L_reduce')

a('L_role1:')
a(f'''s_cmp_lg_u32 {sLAYER}, 0
      s_cbranch_scc1 L_h1''')
a(f'''s_waitcnt vmcnt(0)
      s_barrier
      v_lshrrev_b32 {T(40)}, 2, {vN}
      v_lshl_add_u32 {T(40)}, {vG4}, 3, {T(40)}
      v_mul_u32_u24 {T(40)}, 448, {T(40)}
      v_and_b32 {T(41)}, 3, {vN}
      v_lshl_add_u32 {T(40)}, {T(41)}, 3, {T(40)}
      s_lshl_b32 s3, {sW}, 5
      s_add_u32 s3, s3, {RST}
      v_add_u32 {T(40)}, s3, {T(40)}''')
for t in range(4):
    for h in range(2):
        a(f'ds_read_b64_tr_b16 {ar(AWR + 4 * t + 2 * h, 2)}, {T(40)} offset:{h * 1792 + t * 128}')
for c in range(16):
    a(f'v_lshlrev_b32 v{W2F + 2 * c}, 16, v{W2R + c}')
    a(f'v_and_b32 v{W2F + 2 * c + 1}, {sHIM}, v{W2R + c}')
a(f'''v_lshlrev_b32 {vB1}, 16, {vB1}
      s_waitcnt lgkmcnt(0)''')
for t in range(4):
    a(f'v_mfma_f32_16x16x32_bf16 {TR(8 + 4 * t, 4)}, {vr(ONES,4)}, {ar(AWR + 4 * t, 4)}, 0')
for g in range(1, 4):
    a(f'v_mov_b32_dpp {T(8)}, {T(8 + 4 * g)} quad_perm:[0,1,2,3] row_mask:{hex(1 << g)} bank_mask:0xf')
tagv(T(8), T(8))
lstore(f'buffer_store_dword {T(8)}, {A["aH3BW"]}, {rWS}, {sCS1D} offen')
a(f'''s_cmp_ge_u32 {sI}, 14
      s_cbranch_scc1 L_h1''')
poll([f'buffer_load_dwordx4 {TR(0,4)}, {A["aH3BR"]}, {rWS}, {sCS1D} offen sc1'], [T(i) for i in range(4)], [T(4), T(5)])
a(f'''v_add_f32 {T(0)}, {T(0)}, {T(1)}
      v_add_f32 {T(2)}, {T(2)}, {T(3)}
      v_add_f32 {vCSM}, {T(0)}, {T(2)}''')
allred_rows('v_add_f32', vCSM, T(1))
a('L_h1:')
ts('h_wait')
sf(A['aSFH'])
ts('h_got')
a(f'''ds_write_b16_d16_hi {A['aHPW']}, {vXN}
      s_waitcnt lgkmcnt(0)
      ds_read_b128 {TR(0,4)}, {A['aHPR']}
      s_cmp_eq_u32 {sW}, 0
      s_cbranch_scc0 L_h2''')
slice_stats(A['aST2W'], T(16), T(17), T(18))
a('L_h2:')
a('s_waitcnt lgkmcnt(0)')
for t in range(4):
    a(f'v_mfma_f32_16x16x32_bf16 {TR(8 + 4 * t, 4)}, {TR(0,4)}, {ar(AWR + 4 * t, 4)}, 0')
a(f'v_or_b32 {T(4)}, {vXN}, {vTAG}')
for g in range(1, 4):
    a(f'v_mov_b32_dpp {T(8)}, {T(8 + 4 * g)} quad_perm:[0,1,2,3] row_mask:{hex(1 << g)} bank_mask:0xf')
tagv(T(8), T(8))
lstore(f'buffer_store_dword {T(8)}, {A["aH3BW"]}, {rWS}, 0 offen')
a(f'''s_cmp_eq_u32 {sW}, 1
      s_cbranch_scc0 L_h3''')
lstore(f'buffer_store_dword {T(4)}, {A["aX1W"]}, {rWS}, 0 offen')
a('L_h3:')
ts('h_pub')
a(f'''s_cmp_ge_u32 {sI}, 14
      s_cbranch_scc1 L_mz''')
LD_M = f'buffer_load_dwordx4 {TR(0,4)}, {A["aH3BR"]}, {rWS}, 0 offen sc1'
poll([LD_ST(ST2 - ST1), LD_M], [T(8 + i) for i in range(4)], [T(28), T(29)])
a(LD_M)
ln_math(T(8), T(9), T(10))
a('s_waitcnt vmcnt(0)')
chk([T(i) for i in range(4)], [T(28), T(29)])
a('s_cbranch_vccz L_m1')
poll([LD_M], [T(i) for i in range(4)], [T(28), T(29)])
a('L_m1:')
ts('m_got')
h, ea, e2, n1, d1, n2 = T(0), T(4), T(5), T(6), T(7), T(8)
a(f'''v_add_f32 {T(0)}, {T(0)}, {T(1)}
      v_add_f32 {T(2)}, {T(2)}, {T(3)}
      v_add_f32 {h}, {T(0)}, {T(2)}''')
allred_rows('v_add_f32', h, T(1))
a(f'''v_fma_f32 {h}, -{vMU}, {vCSM}, {h}
      v_mul_f32 {h}, {h}, {vRS}
      v_cvt_pk_bf16_f32 {h}, {h}, {h}
      v_and_b32 {h}, {sHIM}, {h}
      v_add_f32 {h}, {h}, {vB1}
      v_cvt_pk_bf16_f32 {h}, {h}, {h}
      v_and_b32 {h}, {sHIM}, {h}
      v_mul_f32_e64 {ea}, {sNL2E}, |{h}|
      v_exp_f32 {ea}, {ea}
      v_cmp_lt_f32 vcc, 0, {h}
      v_mul_f32 {e2}, {ea}, {ea}
      v_fma_f32 {n1}, {ea}, 2.0, 1.0
      v_fma_f32 {n2}, {ea}, 2.0, {e2}
      v_fma_f32 {d1}, {e2}, 2.0, {n1}
      v_add_f32 {e2}, 2.0, {n2}
      v_cndmask_b32 {d1}, {e2}, {d1}, vcc
      v_cndmask_b32 {n1}, {n2}, {n1}, vcc
      v_rcp_f32 {d1}, {d1}
      v_mul_f32 {n1}, {n1}, {h}
      v_mul_f32 {h}, {n1}, {d1}
      v_cvt_pk_bf16_f32 {h}, {h}, {h}
      v_and_b32 {h}, {sHIM}, {h}''')
acc = [T(12), T(13), T(14), T(15)]
for c in range(16):
    for u in range(2):
        d = acc[(c & 1) * 2 + u]
        op = 'v_mul_f32_dpp' if c < 2 else 'v_fmac_f32_dpp'
        a(f'{op} {d}, {h}, v{W2F + 2 * c + u} row_newbcast:{c} row_mask:0xf bank_mask:0xf')
a(f'''v_add_f32 {T(12)}, {T(12)}, {T(14)}
      v_add_f32 {T(13)}, {T(13)}, {T(15)}''')
tagv(T(12), T(12)); tagv(T(13), T(13))
a('s_branch L_mp')
a('L_mz:')
a(f'''v_mov_b32 {T(12)}, {vTAG}
      v_mov_b32 {T(13)}, {vTAG}''')
a('L_mp:')
lstore(f'buffer_store_dwordx2 {TR(12,2)}, {A["aPW"]}, {rWS}, 0 offen')
ts('m_pub')

a('L_reduce:')
a(f'''s_cmp_lg_u32 {sW}, 0
      s_cbranch_scc1 L_next''')
poll([f'buffer_load_dwordx4 {TR(0,4)}, {A["aRR"]}, {rWS}, 0 offen sc1',
      f'buffer_load_dwordx4 {TR(4,4)}, {A["aRR"]}, {rWS}, 0 offen offset:1024 sc1'],
     [T(i) for i in range(8)], [T(28 + i) for i in range(4)])
ts('r_got')
for k in range(4): a(f'v_add_f32 {T(k)}, {T(k)}, {T(4 + k)}')
red4(T(0), T(1), T(2), T(3), [8])
tagv(T(0), T(0))
a(f'''s_mov_b32 exec_lo, 0x00ff00ff
      s_mov_b32 exec_hi, 0x00ff00ff
      buffer_store_dword {T(0)}, {A['aRW']}, {rWS}, 0 offen sc1
      s_mov_b64 exec, -1''')
ts('r_pub')
a('L_next:')
if DEBUG_TS:
    a(f'''s_cmp_lg_u32 {sLAYER}, 0
          s_cbranch_scc1 L_tsk
          v_mov_b32 v169, {vTS}
          v_mov_b32 {vTS}, 0
L_tsk:''')
a(f'''s_add_u32 {sLAYER}, {sLAYER}, 1
      s_cmp_eq_u32 {sLAYER}, 1
      s_cbranch_scc1 L_qfront
      s_or_b32 s3, {sG}, {sCG}
      s_cmp_eq_u32 s3, 0
      s_cbranch_scc1 L_qfront
      s_branch L_exit''')
a('L_final:')
a(f'''s_mov_b32 exec_lo, 0x00ff00ff
      s_mov_b32 exec_hi, 0x00ff00ff
      buffer_store_short_d16_hi {vXN}, {A['aOUT']}, {rOUT}, 0 offen
      s_mov_b64 exec, -1
      s_or_b32 s3, {sJ}, {sW}
      s_cmp_lg_u32 s3, 0
      s_cbranch_scc1 L_exit
      s_add_u32 s3, {sEP}, 2
      v_mov_b32 {T(0)}, s3
      v_mov_b32 {T(1)}, 0
      s_mov_b64 exec, 1
      buffer_store_dword {T(0)}, {T(1)}, {rWS}, 0 offen sc1
      s_mov_b64 exec, -1''')
a('L_exit:')
if DEBUG_TS:
    ts('exit')
    a(f'''s_lshl_b32 s3, s2, 10
          s_lshl_b32 s92, {sW}, 8
          s_add_u32 s3, s3, s92
          s_add_u32 s3, s3, {TSB}
          v_lshl_add_u32 {T(0)}, {vL}, 2, s3
          s_mov_b32 exec_hi, 0
          buffer_store_dword v169, {T(0)}, {rWS}, 0 offen
          buffer_store_dword {vTS}, {T(0)}, {rWS}, 0 offen offset:128''')
a('L_bail:')
a('L_end:')
a('s_endpgm')
for s in stubs: a(s)
a('L_codeend:')
a.raw(f'''.section .rodata,"a"
.p2align 6
.amdhsa_kernel {NAME}_kernel
  .amdhsa_next_free_vgpr {256 + NAGPR}
  .amdhsa_next_free_sgpr 102
  .amdhsa_accum_offset 256
  .amdhsa_group_segment_fixed_size 0
  .amdhsa_kernarg_size 96
  .amdhsa_user_sgpr_count 2
  .amdhsa_user_sgpr_kernarg_segment_ptr 1
  .amdhsa_system_sgpr_workgroup_id_x 1
.end_amdhsa_kernel''')
open(OUT, 'w').write(a.text())
if DEBUG_TS:
    import json
    json.dump(TSN, open(OUT + '.ts.json', 'w'))
print('written', OUT, 'nops', a.nops_inserted, 'stamps', _ts[0])

import subprocess
subprocess.check_call(['clang', '-x', 'assembler', '-target', 'amdgcn-amd-amdhsa', '-mcpu=gfx950', '-c', OUT, '-o', 'gen_check.o'])
```

```python
import sys, struct
from asmlib import Asm

NAME = 'interleave_layers__sliding_block_cached__dense_activation_mish__decode'
DEBUG_TS = '--ts' in sys.argv
OUT = [a for a in sys.argv[1:] if not a.startswith('--')]
OUT = OUT[0] if OUT else f'cdna_kernels/{NAME}.s'
LDFL = 'nt' if '--nont' not in sys.argv else ''

def f32(x): return struct.unpack('<I', struct.pack('<f', x))[0]

XC, ST1, ST2, X1, H3, H4B = 0x1000, 0x2000, 0x2800, 0x4000, 0x8000, 0xC000
H1, CS, H2AS, H3B, CS1, H2A, H2B, H4A, TSB = 0x10000, 0x20000, 0x30000, 0x40000, 0x60000, 0x80000, 0x100000, 0x140000, 0x180000
WS_SIZE = 0x1C0000
WQST, KST, RST = 0, 16384, 49152
XB, QB, ML, O2, HP, OB = 81920, 82432, 83456, 83584, 83648, 84992
LDS_SIZE = 94208
sG, sJ, sW, sKAP = 's4', 's5', 's6', 's7'
rX, rK, rV, rWQ, rWR, rW2, rB1, rWS, rOUT, rCODE = [f's[{b}:{b+3}]' for b in range(8, 48, 4)]
sCG, sI, sROLE, sTAG, sFF, sMODE, sLAYER, sCNT, sXCC, sEP, sSLO, sSHI = [f's{i}' for i in range(48, 60)]
sC4K, sC8K, sC12K, sHIM, sCEXP, sNL2E, sCSD, sCS1D = [f's{i}' for i in range(60, 68)]
sT0, sT1, sT2, sT3 = 's88', 's89', 's90', 's91'
vL, vN, vG4, vTAG, vCOL = 'v1', 'v2', 'v3', 'v4', 'v5'
_addr = ['aXW', 'aXR', 'aH1W', 'aSTW', 'aST2W', 'aH1R', 'aSTR', 'aQW', 'aQR', 'aOW', 'aMW', 'aLW', 'aOR', 'aMLR',
         'aH2AW', 'aH2ASW', 'aH2AR', 'aH2ASR', 'aO2W', 'aO2R', 'aPW', 'aRR', 'aRW', 'aSFH', 'aSFQ', 'aX1W', 'aX1R',
         'aHPW', 'aHPR', 'aH3BW', 'aH3BR', 'aOUT']
A = {n: f'v{8 + i}' for i, n in enumerate(_addr)}
assert len(_addr) <= 32
VRAW = 40
VOP = 76
W2F = 108
W2R = 140
ONES = 156
vCS0, vCS1, vCSM, vB1, vXRES, vTS, vXN, vMU, vRS = [f'v{i}' for i in range(160, 169)]
TB = 172
def T(i): return f'v{TB + i}'
def TR(i, n): return f'v[{TB + i}:{TB + i + n - 1}]'
def vr(b, n): return f'v[{b}:{b + n - 1}]'
def ar(b, n): return f'a[{b}:{b + n - 1}]'
AK, AWQ, AWR = 0, 32, 48
NAGPR = 80

a = Asm()
stubs = []
_ts = [0]
TSN = {}

def ts(name):
    if not DEBUG_TS: return
    k = _ts[0]; _ts[0] += 1
    TSN[k] = name
    a(f'''s_mov_b32 m0, s96
          s_waitcnt lgkmcnt(0)
          v_writelane_b32 {vTS}, s94, m0
          s_memrealtime s[94:95]
          s_lshl_b32 s96, {sLAYER}, 5
          s_add_u32 s96, s96, {k}''')

def lstore(ins):
    slow, back = a.newlabel('slow'), a.newlabel('back')
    a(f's_cmp_eq_u32 {sMODE}, 0')
    a(f's_cbranch_scc1 {slow}')
    a(ins)
    a(f'{back}:')
    stubs.append(f'{slow}:\n {ins} sc1\n s_nop 1\n s_branch {back}')

def chk(regs, tmp):
    regs = list(regs)
    if len(regs) == 1:
        a(f'v_cmp_ne_u32_sdwa vcc, {regs[0]}, {sTAG} src0_sel:BYTE_0 src1_sel:BYTE_0')
        return
    parts = []
    for i in range(0, len(regs), 2):
        t = tmp[i // 2]
        a(f'v_bitop3_b32 {t}, {regs[i]}, {regs[i + 1]}, {sTAG} bitop3:0x7e')
        parts.append(t)
    while len(parts) > 1:
        if len(parts) >= 3:
            a(f'v_or3_b32 {parts[0]}, {parts[0]}, {parts[1]}, {parts[2]}')
            parts = [parts[0]] + parts[3:]
        else:
            a(f'v_or_b32 {parts[0]}, {parts[0]}, {parts[1]}')
            parts = [parts[0]]
    a(f'v_cmp_ne_u32_sdwa vcc, {parts[0]}, 0 src0_sel:BYTE_0 src1_sel:DWORD')

def poll(loads, regs, tmp, sleep=0):
    L = a.newlabel('poll')
    a(f'{L}:')
    for ld in loads: a(ld)
    a(f's_sub_u32 {sCNT}, {sCNT}, 1')
    a('s_cbranch_scc1 L_bail')
    if sleep: a(f's_sleep {sleep}')
    a('s_waitcnt vmcnt(0)')
    chk(regs, tmp)
    a(f's_cbranch_vccnz {L}')

def tagv(dst, src): a(f'v_bfi_b32 {dst}, {sFF}, {vTAG}, {src}')

def red4(t0, t1, t2, t3, rors):
    a(f'''v_permlane32_swap_b32 {t0}, {t2}
          v_permlane32_swap_b32 {t1}, {t3}
          v_add_f32 {t0}, {t0}, {t2}
          v_add_f32 {t1}, {t1}, {t3}
          v_permlane16_swap_b32 {t0}, {t1}
          v_add_f32 {t0}, {t0}, {t1}''')
    for r in rors: a(f'v_add_f32_dpp {t0}, {t0}, {t0} row_ror:{r} row_mask:0xf bank_mask:0xf')

def allred_rows(op, x, tmp):
    a(f'''v_mov_b32 {tmp}, {x}
          v_permlane16_swap_b32 {tmp}, {x}
          {op} {x}, {x}, {tmp}
          v_mov_b32 {tmp}, {x}
          v_permlane32_swap_b32 {tmp}, {x}
          {op} {x}, {x}, {tmp}''')

def sf(addr):
    poll([f'buffer_load_dwordx4 {TR(0,4)}, {addr}, {rWS}, 0 offen sc1'], [T(i) for i in range(4)], [T(4), T(5)])
    red4(T(0), T(1), T(2), T(3), [8])
    a(f'''v_cvt_pk_bf16_f32 {T(0)}, {T(0)}, {T(0)}
          v_and_b32 {T(0)}, {sHIM}, {T(0)}
          v_add_f32 {T(0)}, {T(0)}, {vXRES}
          v_cvt_pk_bf16_f32 {T(0)}, {T(0)}, {T(0)}
          v_and_b32 {vXN}, {sHIM}, {T(0)}''')

def slice_stats(addr, t0, t1, t2):
    a(f'''v_mul_f32 {t1}, {vXN}, {vXN}
          v_add_f32_dpp {t0}, {vXN}, {vXN} row_ror:1 row_mask:0xf bank_mask:0xf
          v_add_f32_dpp {t1}, {t1}, {t1} row_ror:1 row_mask:0xf bank_mask:0xf
          v_add_f32_dpp {t0}, {t0}, {t0} row_ror:2 row_mask:0xf bank_mask:0xf
          v_add_f32_dpp {t1}, {t1}, {t1} row_ror:2 row_mask:0xf bank_mask:0xf
          v_add_f32_dpp {t0}, {t0}, {t0} row_ror:4 row_mask:0xf bank_mask:0xf
          v_add_f32_dpp {t1}, {t1}, {t1} row_ror:4 row_mask:0xf bank_mask:0xf
          v_permlane32_swap_b32 {t0}, {t1}
          v_add_f32 {t0}, {t0}, {t1}
          v_mov_b32 {t2}, {t0}
          v_permlane16_swap_b32 {t2}, {t0}
          v_add_f32 {t0}, {t0}, {t2}''')
    tagv(t0, t0)
    a('s_mov_b32 exec_lo, 3\n s_mov_b32 exec_hi, 3')
    lstore(f'buffer_store_dword {t0}, {addr}, {rWS}, 0 offen')
    a('s_mov_b64 exec, -1')

def ln_math(s1, s2, t):
    for r in (8, 4, 2, 1):
        a(f'v_add_f32_dpp {s1}, {s1}, {s1} row_ror:{r} row_mask:0xf bank_mask:0xf')
        a(f'v_add_f32_dpp {s2}, {s2}, {s2} row_ror:{r} row_mask:0xf bank_mask:0xf')
    a(f'''v_mul_f32 {s1}, {hex(f32(1.0 / 512))}, {s1}
          v_mul_f32 {s2}, {hex(f32(1.0 / 512))}, {s2}
          v_fma_f32 {s2}, -{s1}, {s1}, {s2}
          v_max_f32 {s2}, 0, {s2}
          v_cvt_pk_bf16_f32 {t}, {s1}, {s2}
          v_and_b32 {s2}, {sHIM}, {t}
          v_lshlrev_b32 {vMU}, 16, {t}
          v_add_f32 {s2}, {hex(f32(1e-5))}, {s2}
          v_cvt_pk_bf16_f32 {s2}, {s2}, {s2}
          v_and_b32 {s2}, {sHIM}, {s2}
          v_sqrt_f32 {s2}, {s2}
          v_cvt_pk_bf16_f32 {s2}, {s2}, {s2}
          v_and_b32 {s2}, {sHIM}, {s2}
          v_rcp_f32 {vRS}, {s2}''')

def srd(base, lo, hi, off_lo, nrec, off_hi=None):
    a(f's_add_u32 s{base}, {lo}, {off_lo}')
    a(f's_addc_u32 s{base+1}, {hi}, {off_hi if off_hi else 0}')
    a(f's_mov_b32 s{base+2}, {nrec}')
    a(f's_mov_b32 s{base+3}, 0x20000')

a.raw(open(f'cdna_kernels/{NAME}.s.ref').read().split('; Override launch geometry')[0].rstrip())
a.raw(f'; @launch grid=(256,1,1) block=(256,1,1) lds={LDS_SIZE}')
a.raw(f'''; Persistent kernel: one workgroup per CU keeps its share of K, V and all weights on chip for both layers;
.amdgcn_target "amdgcn-amd-amdhsa--gfx950"
.text
.globl {NAME}_kernel
.p2align 8
.type {NAME}_kernel,@function
{NAME}_kernel:''')
a('L_start:')
a(f'''s_cmp_ge_u32 s2, 256
      s_cbranch_scc1 L_end
      s_load_dwordx16 s[68:83], s[0:1], 0
      s_load_dwordx8 s[84:91], s[0:1], 64
      v_lshrrev_b32 v6, 6, v0
      v_and_b32 {vL}, 63, v0
      s_and_b32 {sG}, s2, 7
      s_lshr_b32 {sJ}, s2, 3
      v_readfirstlane_b32 {sW}, v6
      s_and_b32 {sI}, {sJ}, 15
      s_lshr_b32 {sKAP}, {sI}, 2
      s_lshr_b32 {sROLE}, {sJ}, 4
      s_and_b32 {sCG}, {sJ}, 3
      s_lshl_b32 s3, {sROLE}, 2
      s_or_b32 {sCG}, {sCG}, s3
      s_getreg_b32 {sXCC}, hwreg(HW_REG_XCC_ID)
      v_and_b32 {vN}, 15, {vL}
      v_lshrrev_b32 {vG4}, 4, {vL}
      v_and_b32 v6, 7, {vL}
      v_lshl_add_u32 {vCOL}, v6, 2, {vG4}
      s_mov_b32 {sLAYER}, 0
      s_mov_b32 {sMODE}, 0
      s_mov_b32 {sCNT}, 400000
      s_movk_i32 {sFF}, 0xff
      s_mov_b32 {sHIM}, 0xffff0000
      s_movk_i32 {sC4K}, 0x1000
      s_movk_i32 {sC8K}, 0x2000
      s_movk_i32 {sC12K}, 0x3000''')
a(f'''s_getpc_b64 s[44:45]
L_pc:
      s_sub_u32 s44, s44, L_pc-L_start
      s_subb_u32 s45, s45, 0
      s_mov_b32 s46, L_codeend-L_start
      s_mov_b32 s47, 0x20000
      v_lshlrev_b32 v7, 7, v0''')
if DEBUG_TS: a(f'v_mov_b32 {vTS}, 0\n s_mov_b32 s96, 63\n s_mov_b32 s94, 0')
ts('start')
a('s_waitcnt lgkmcnt(0)')
a(f's_load_dword {sEP}, s[90:91], 0')
srd(8, 's68', 's69', 0, 1024)
a(f'''s_lshl_b32 s3, {sKAP}, 20
      s_lshl_b32 s92, {sG}, 10
      s_add_u32 s3, s3, s92
      s_lshl_b32 s92, {sCG}, 7
      s_add_u32 s3, s3, s92''')
srd(20, 's74', 's75', 's3', 127 * 8192 + 128)
a(f'''s_lshl_b32 s3, {sKAP}, 7
      s_lshl_b32 s92, {sW}, 5
      s_add_u32 s3, s3, s92
      v_add_lshl_u32 {A['aOUT']}, s3, {vCOL}, 1
      buffer_load_ushort {vXN}, {A['aOUT']}, {rX}, 0 offen''')
a(f'''v_lshrrev_b32 {T(0)}, 3, {vL}
      v_lshlrev_b32 {T(0)}, 13, {T(0)}
      v_and_b32 {T(1)}, 7, {vL}
      v_lshl_add_u32 {T(0)}, {T(1)}, 4, {T(0)}
      s_lshl_b32 s92, {sW}, 18
      s_lshl_b32 s93, {sW}, 12''')
for u in range(4):
    a(f's_add_u32 m0, s93, {WQST + u * 1024}')
    a(f'buffer_load_dwordx4 {T(0)}, {rWQ}, s92 offen {LDFL} lds')
    if u < 3: a(f's_add_u32 s92, s92, 0x10000')
a(f'''s_lshl_b32 s3, {sJ}, 15
      s_add_u32 s3, s3, {61440 * 256}
      s_lshl_b32 s92, {sG}, 24
      s_add_u32 s3, s3, s92''')
srd(12, 's70', 's71', 's3', 32768)
srd(16, 's72', 's73', 's3', 32768)
a(f'''v_xor_b32 {T(1)}, {vN}, {vG4}
      v_lshlrev_b32 {T(1)}, 4, {T(1)}
      v_lshl_add_u32 {T(1)}, {vG4}, 8, {T(1)}
      v_xor_b32 {T(2)}, 64, {T(1)}
      v_xor_b32 {T(3)}, 128, {T(1)}
      v_xor_b32 {T(4)}, 192, {T(1)}
      s_lshl_b32 s92, {sW}, 13''')
for hh in range(2):
    a(f's_add_u32 m0, s92, {KST + hh * 4096}')
    if hh: a(f's_add_u32 s92, s92, 4096')
    for u in range(4):
        a(f'buffer_load_dwordx4 {T(1 + u)}, {rK}, s92 offen offset:{u * 1024} {LDFL} lds')
a(f'buffer_load_dword v6, v7, {rCODE}, 0 offen')
NPRE = 1
srd(36, 's90', 's91', 0, WS_SIZE)
srd(40, 's86', 's87', 0, 1024)
a(f'''s_cmp_lg_u32 {sROLE}, 0
      s_cbranch_scc1 L_srd1''')
a(f'''s_lshl_b32 s3, {sG}, 19
      s_lshl_b32 s92, {sI}, 15
      s_add_u32 s3, s3, s92''')
srd(24, 's76', 's77', 's3', 32768)
srd(28, 's84', 's85', 0, 0)
srd(32, 's82', 's83', 0, 0)
a('s_branch L_srd2')
a('L_srd1:')
a(f'''s_mul_i32 s3, {sI}, {32 * 3584}
      s_mul_i32 s92, {sG}, 448
      s_add_u32 s3, s3, s92''')
srd(24, 's80', 's81', 's3', 31 * 3584 + 448)
a(f'''s_mul_i32 s92, {sG}, 14
      s_add_u32 s92, s92, {sI}
      s_lshl_b32 s3, s92, 14''')
srd(28, 's84', 's85', 's3', 16384)
a('s_lshl_b32 s3, s92, 5')
srd(32, 's82', 's83', 's3', 32)
a(f'''s_cmp_lt_u32 {sI}, 14
      s_cbranch_scc1 L_srd2
      s_mov_b32 s28, s84
      s_mov_b32 s29, s85
      s_mov_b32 s30, 0
      s_mov_b32 s32, s82
      s_mov_b32 s33, s83
      s_mov_b32 s34, 0''')
a('L_srd2:')
a(f'''s_mov_b32 {sSLO}, 0x05040100
      s_mov_b32 {sSHI}, 0x07060302
      s_mov_b32 {sCEXP}, {hex(f32(128 ** -0.5 * 1.4426950408889634))}
      s_mov_b32 {sNL2E}, {hex(f32(-1.4426950408889634))}
      s_mov_b32 {sCSD}, {CS - H1}
      s_mov_b32 {sCS1D}, {CS1 - H3B}
      v_mov_b32 v{ONES}, 0x3f803f80
      v_mov_b32 v{ONES+1}, 0x3f803f80
      v_mov_b32 v{ONES+2}, 0x3f803f80
      v_mov_b32 v{ONES+3}, 0x3f803f80''')

def sexpr(dst, terms, const):
    a(f's_mov_b32 {dst}, {const}')
    for reg, sh in terms:
        a(f's_lshl_b32 s3, {reg}, {sh}')
        a(f's_add_u32 {dst}, {dst}, s3')
def vaddr(name, sterms, const, vterms):
    sexpr('s92', sterms, const)
    first = True
    for reg, sh in vterms:
        if first: a(f'v_lshl_add_u32 {A[name]}, {reg}, {sh}, s92'); first = False
        else: a(f'v_lshl_add_u32 {A[name]}, {reg}, {sh}, {A[name]}')
    if first: a(f'v_mov_b32 {A[name]}, s92')
vL31, vL5, vL1, vLh, vN2 = T(8), T(9), T(10), T(11), T(12)
a(f'''v_and_b32 {vL31}, 31, {vL}
      v_lshrrev_b32 {vL5}, 5, {vL}
      v_and_b32 {vL1}, 1, {vL}
      v_lshrrev_b32 {vLh}, 1, {vL}
      v_lshrrev_b32 {vN2}, 2, {vN}''')
vaddr('aXW', [(sW, 6)], XB, [(vCOL, 1)])
vaddr('aXR', [], XB, [(vG4, 4)])
vaddr('aH1W', [(sG, 13), (sKAP, 11), (sCG, 8), (sW, 6)], H1, [(vN, 2)])
vaddr('aSTW', [(sG, 8), (sKAP, 6), (sW, 4)], ST1, [(vL5, 2), (vL1, 3)])
vaddr('aST2W', [(sG, 8), (sI, 4)], ST2, [(vL5, 2), (vL1, 3)])
vaddr('aH1R', [(sG, 13), (sW, 9)], H1, [(vL5, 12), (vL31, 4)])
vaddr('aSTR', [(sG, 8)], ST1, [(vN, 4)])
vaddr('aQW', [(sW, 8)], QB, [(vL31, 3), (vL5, 2)])
vaddr('aQR', [], QB, [(vN2, 8), (vG4, 4)])
vaddr('aOW', [(sW, 11)], OB, [(vG4, 9), (vN, 5)])
vaddr('aMW', [(sW, 2)], ML, [(vN2, 5)])
vaddr('aLW', [(sW, 2)], ML + 16, [(vG4, 5)])
vaddr('aOR', [(sW, 9)], OB, [(vL, 3)])
vaddr('aMLR', [(sW, 5)], ML, [])
vaddr('aH2AW', [(sG, 16), (sW, 14), (sJ, 7)], H2A, [(vG4, 12), (vN, 3)])
vaddr('aH2ASW', [(sG, 11), (sW, 9), (sJ, 4)], H2AS, [])
vaddr('aH2AR', [(sG, 16), (sI, 12), (sW, 5)], H2A, [(vLh, 7), (vL1, 4)])
vaddr('aH2ASR', [(sG, 11), (sKAP, 9)], H2AS, [(vLh, 4)])
vaddr('aO2W', [(sW, 4)], O2, [(vL1, 3), (vG4, 1)])
vaddr('aO2R', [], O2, [(vG4, 4)])
vaddr('aPW', [(sROLE, 18), (sG, 15), (sW, 13), (sI, 7)], H2B, [(vG4, 11), (vN, 3)])
vaddr('aRR', [(sROLE, 18), (sG, 15), (sI, 11)], H2B, [(vL, 4)])
assert H4A - H2B == 1 << 18 and H4B - H3 == 1 << 14
a(f'''v_and_b32 {T(13)}, 1, {vCOL}
      v_lshlrev_b32 {T(13)}, 4, {T(13)}
      v_lshrrev_b32 {T(14)}, 1, {vCOL}
      v_add_u32 {T(13)}, {T(13)}, {T(14)}
      s_cmp_lg_u32 {sROLE}, 0
      s_cselect_b64 vcc, -1, 0
      v_cndmask_b32 {T(13)}, {T(13)}, {vCOL}, vcc''')
vaddr('aRW', [(sROLE, 14), (sI, 10), (sG, 7)], H3, [(T(13), 2)])
vaddr('aSFH', [(sI, 10)], H3, [(vL, 4)])
vaddr('aSFQ', [(sKAP, 12), (sW, 10)], H4B, [(vL, 4)])
vaddr('aX1W', [(sG, 11), (sI, 7)], X1, [(vCOL, 2)])
vaddr('aX1R', [(sG, 11), (sKAP, 9), (sW, 7)], X1, [(vCOL, 2)])
vaddr('aHPW', [(sW, 6)], HP, [(vCOL, 1)])
vaddr('aHPR', [(sW, 6)], HP, [(vG4, 4)])
a(f's_and_b32 s93, {sI}, 3')
vaddr('aH3BW', [(sG, 14), (sW, 10), (sKAP, 8), ('s93', 2)], H3B, [(vG4, 12), (vN, 4)])
vaddr('aH3BR', [(sG, 14), (sI, 10)], H3B, [(vL, 4)])
a(f'''s_waitcnt lgkmcnt(0)
      s_add_u32 {sTAG}, {sEP}, 1
      s_and_b32 {sTAG}, {sTAG}, 0xff
      v_mov_b32 {vTAG}, {sTAG}''')
a(f'''s_and_b32 {sXCC}, {sXCC}, 0xff
      s_lshl_b32 {sXCC}, {sXCC}, 8
      s_or_b32 {sXCC}, {sXCC}, {sTAG}
      v_mov_b32 {T(16)}, {sXCC}
      v_mov_b32 {T(17)}, {sXCC}
      v_mov_b32 {T(18)}, {sXCC}
      v_mov_b32 {T(19)}, {sXCC}''')
sexpr('s92', [(sG, 9), (sJ, 4)], XC)
a(f'''v_mov_b32 {T(20)}, s92
      s_mov_b64 exec, 1
      buffer_store_dwordx4 {TR(16,4)}, {T(20)}, {rWS}, 0 offen sc1
      s_mov_b64 exec, -1''')
a(f'''s_waitcnt vmcnt({4 + 8 + NPRE + 1})
      v_lshlrev_b32 {vXN}, 16, {vXN}
      s_branch L_qmid''')

a('L_qfront:')
ts('qf_start')
poll([f'buffer_load_dword {vXRES}, {A["aX1R"]}, {rWS}, 0 offen sc1'], [vXRES], [], sleep=1)
a(f'v_and_b32 {vXRES}, {sHIM}, {vXRES}')
sf(A['aSFQ'])
a(f'''s_cmp_eq_u32 {sLAYER}, 2
      s_cbranch_scc1 L_final''')
a(f'''s_add_u32 {sTAG}, {sTAG}, 1
      s_and_b32 {sTAG}, {sTAG}, 0xff
      v_mov_b32 {vTAG}, {sTAG}''')
a('L_qmid:')
ts('qmid')
a(f'''ds_write_b16_d16_hi {A['aXW']}, {vXN}
      s_cmp_lg_u32 {sLAYER}, 0
      s_cbranch_scc1 L_q1
      s_waitcnt vmcnt({8 + NPRE + 1}) lgkmcnt(0)
      s_barrier''')
a(f'''v_lshrrev_b32 {T(0)}, 2, {vN}
      v_lshl_add_u32 {T(0)}, {vG4}, 3, {T(0)}
      v_lshlrev_b32 {T(0)}, 7, {T(0)}
      v_and_b32 {T(1)}, 3, {vN}
      v_lshl_add_u32 {T(0)}, {T(1)}, 3, {T(0)}
      s_lshl_b32 s3, {sW}, 5
      v_add_u32 {T(0)}, s3, {T(0)}''')
for s in range(4):
    for h in range(2):
        a(f'ds_read_b64_tr_b16 {ar(AWQ + 4 * s + 2 * h, 2)}, {T(0)} offset:{WQST + s * 4096 + h * 512}')
a('s_waitcnt lgkmcnt(0)')
for s in range(4):
    a(f'v_mfma_f32_16x16x32_bf16 {TR(24,4)}, {vr(ONES,4)}, {ar(AWQ + 4 * s, 4)}, {"0" if s == 0 else TR(24,4)}')
tagv(T(24), T(24))
a(f'''s_mov_b64 exec, 0xffff
      buffer_store_dword {T(24)}, {A['aH1W']}, {rWS}, {sCSD} offen sc1
      s_mov_b64 exec, -1
      s_branch L_q2''')
a('L_q1:')
a('''s_waitcnt lgkmcnt(0)
     s_barrier''')
a('L_q2:')
for s in range(4):
    a(f'ds_read_b128 {TR(4 * s, 4)}, {A["aXR"]} offset:{s * 64}')
a(f'''s_and_b32 s3, {sI}, 3
      s_lshl_b32 s3, s3, 6
      s_add_u32 s3, s3, {XB}
      v_lshl_add_u32 {T(20)}, {vCOL}, 1, s3
      ds_read_u16 {vXRES}, {T(20)}
      s_cmp_lg_u32 {sCG}, 0
      s_cbranch_scc1 L_q3''')
slice_stats(A['aSTW'], T(16), T(17), T(18))
a('L_q3:')
for s in range(4):
    a(f's_waitcnt lgkmcnt({4 - s})')
    a(f'v_mfma_f32_16x16x32_bf16 {TR(24,4)}, {TR(4 * s, 4)}, {ar(AWQ + 4 * s, 4)}, {"0" if s == 0 else TR(24,4)}')
a('s_mov_b64 exec, 0xffff')
tagv(T(24), T(24))
lstore(f'buffer_store_dword {T(24)}, {A["aH1W"]}, {rWS}, 0 offen')
a(f'''s_mov_b64 exec, -1
      s_waitcnt lgkmcnt(0)
      v_lshlrev_b32 {vXRES}, 16, {vXRES}''')
ts('q_pub')

LD_ST = lambda off: f'buffer_load_dwordx4 {TR(8,4)}, {A["aSTR"]}, {rWS}, 0 offen offset:{off} sc1'
LD_V0 = f'buffer_load_dwordx4 {TR(0,4)}, {A["aH1R"]}, {rWS}, 0 offen sc1'
LD_V1 = f'buffer_load_dwordx4 {TR(4,4)}, {A["aH1R"]}, {rWS}, 0 offen offset:2048 sc1'
a(f'''s_cmp_lg_u32 {sLAYER}, 0
      s_cbranch_scc1 L_af1''')
a(f'''v_lshlrev_b32 {T(40)}, 10, {vG4}
      v_lshl_add_u32 {T(40)}, {vN}, 4, {T(40)}
      s_lshl_b32 s92, {sW}, 13
      s_add_u32 s93, s92, 4096''')
for e in range(8):
    t, r = e >> 2, e & 3
    a(f'buffer_load_dwordx4 {vr(VRAW + 4 * e, 4)}, {T(40)}, {rV}, {"s93" if t else "s92"} offen offset:{r * 256} {LDFL}')
sexpr('s92', [(sG, 9)], XC)
a(f'''v_and_b32 {T(41)}, 31, {vL}
      v_lshl_add_u32 {T(41)}, {T(41)}, 4, s92''')
SET0 = [f'buffer_load_dwordx4 {TR(12,4)}, {T(41)}, {rWS}, 0 offen sc1',
        LD_ST(0),
        f'buffer_load_dwordx4 {TR(16,4)}, {A["aH1R"]}, {rWS}, {sCSD} offen sc1',
        f'buffer_load_dwordx4 {TR(20,4)}, {A["aH1R"]}, {rWS}, {sCSD} offen offset:2048 sc1',
        LD_V0, LD_V1]
for ld in SET0: a(ld)
a(f'''v_xor_b32 {T(42)}, {vN}, {vG4}
      v_lshlrev_b32 {T(42)}, 4, {T(42)}
      v_lshl_add_u32 {T(42)}, {vN}, 8, {T(42)}
      s_lshl_b32 s3, {sW}, 13
      s_add_u32 s3, s3, {KST}
      v_add_u32 {T(42)}, s3, {T(42)}
      v_xor_b32 {T(43)}, 64, {T(42)}
      v_xor_b32 {T(44)}, 128, {T(42)}
      v_xor_b32 {T(45)}, 192, {T(42)}
      s_waitcnt vmcnt(14)''')
ts('k_landed')
for t in range(2):
    for s in range(4):
        a(f'ds_read_b128 {ar(AK + (t * 4 + s) * 4, 4)}, {T(42 + s)} offset:{t * 4096}')
a(f'''s_cmp_lg_u32 {sROLE}, 0
      s_cbranch_scc1 L_rw1''')
a(f'''v_lshlrev_b32 {T(46)}, 10, {vG4}
      v_lshl_add_u32 {T(46)}, {vN}, 4, {T(46)}
      s_lshl_b32 s92, {sW}, 8
      s_lshl_b32 s93, {sW}, 13''')
for u in range(8):
    a(f's_add_u32 m0, s93, {RST + u * 1024}')
    a(f'buffer_load_dwordx4 {T(46)}, {rWR}, s92 offen {LDFL} lds')
    if u < 7: a(f's_add_u32 s92, s92, 4096')
a('''s_waitcnt vmcnt(8)
     s_branch L_rw2''')
a('L_rw1:')
a(f'''s_lshl_b32 s3, {sW}, 6
      v_add_u32 {T(46)}, s3, {vL}
      s_lshl_b32 s93, {sW}, 10
      s_movk_i32 s92, 3584''')
for u in range(4):
    a(f'''v_mul_u32_u24 {T(47)}, 2341, {T(46)}
          v_lshrrev_b32 {T(47)}, 16, {T(47)}
          v_mul_u32_u24 {T(48)}, 28, {T(47)}
          v_sub_u32 {T(48)}, {T(46)}, {T(48)}
          v_lshlrev_b32 {T(48)}, 4, {T(48)}
          v_mad_u32_u24 {T(48)}, {T(47)}, s92, {T(48)}
          s_add_u32 m0, s93, {RST + u * 4096}
          v_add_u32 {T(46)}, 256, {T(46)}
          buffer_load_dwordx4 {T(48)}, {rWR}, 0 offen {LDFL} lds''')
a(f'''s_lshl_b32 s3, {sW}, 8
      v_lshl_add_u32 {T(47)}, {vL}, 2, s3''')
for c in range(16):
    so = ['0', sC4K, sC8K, sC12K][c >> 2]
    a(f'buffer_load_dword v{W2R + c}, {T(47)}, {rW2}, {so} offen offset:{(c & 3) * 1024} {LDFL}')
a(f'''v_lshlrev_b32 {T(48)}, 1, {vN}
      buffer_load_ushort {vB1}, {T(48)}, {rB1}, 0 offen
      s_waitcnt vmcnt(21)''')
a('L_rw2:')
chk([T(i) for i in range(24)], [T(28 + i) for i in range(12)])
a('s_cbranch_vccz L_af0ok')
ts('af0_retry')
poll(SET0, [T(i) for i in range(24)], [T(28 + i) for i in range(12)])
a('L_af0ok:')
a(f'''v_cmp_ne_u32 vcc, {sXCC}, {T(12)}
      s_cmp_eq_u64 vcc, 0
      s_cselect_b32 {sMODE}, 1, 0''')
for k in range(4): a(f'v_add_f32 {T(16 + k)}, {T(16 + k)}, {T(20 + k)}')
a(f'''v_permlane32_swap_b32 {T(16)}, {T(18)}
      v_permlane32_swap_b32 {T(17)}, {T(19)}
      v_add_f32 {vCS0}, {T(16)}, {T(18)}
      v_add_f32 {vCS1}, {T(17)}, {T(19)}''')
ln_math(T(8), T(9), T(10))
a('s_branch L_aft')
a('L_af1:')
poll([LD_ST(0), LD_V0, LD_V1], [T(8 + i) for i in range(4)], [T(28), T(29)])
a(LD_V0); a(LD_V1)
ln_math(T(8), T(9), T(10))
a('s_waitcnt vmcnt(0)')
chk([T(i) for i in range(8)], [T(28 + i) for i in range(4)])
a('s_cbranch_vccz L_aft')
poll([LD_V0, LD_V1], [T(i) for i in range(8)], [T(28 + i) for i in range(4)])
a('L_aft:')
ts('q_got')
for k in range(4): a(f'v_add_f32 {T(k)}, {T(k)}, {T(4 + k)}')
a(f'''v_permlane32_swap_b32 {T(0)}, {T(2)}
      v_permlane32_swap_b32 {T(1)}, {T(3)}
      v_add_f32 {T(0)}, {T(0)}, {T(2)}
      v_add_f32 {T(1)}, {T(1)}, {T(3)}
      v_fma_f32 {T(0)}, -{vMU}, {vCS0}, {T(0)}
      v_fma_f32 {T(1)}, -{vMU}, {vCS1}, {T(1)}
      v_mul_f32 {T(0)}, {T(0)}, {vRS}
      v_mul_f32 {T(1)}, {T(1)}, {vRS}
      v_cvt_pk_bf16_f32 {T(0)}, {T(0)}, {T(1)}
      ds_write_b32 {A['aQW']}, {T(0)}
      s_cmp_lg_u32 {sLAYER}, 0
      s_cbranch_scc1 L_a1''')
for jd in range(8):
    for e in range(0, 8, 2):
        a(f'v_perm_b32 v{VOP + 4 * jd + e // 2}, v{VRAW + 4 * (e + 1) + jd // 2}, v{VRAW + 4 * e + jd // 2}, {sSHI if jd & 1 else sSLO}')
a('L_a1:')
a('''s_waitcnt lgkmcnt(0)
     s_barrier''')
for s in range(4): a(f'ds_read_b128 {TR(4 * s, 4)}, {A["aQR"]} offset:{s * 64}')
D0, D1 = 16, 20
for s in range(4):
    a(f's_waitcnt lgkmcnt({3 - s})')
    for t in range(2):
        d = TR(D0 + 4 * t, 4)
        a(f'v_mfma_f32_16x16x32_bf16 {d}, {ar(AK + (t * 4 + s) * 4, 4)}, {TR(4 * s, 4)}, {"0" if s == 0 else d}')
mx, tmp = T(24), T(25)
a(f'''v_max3_f32 {mx}, {T(16)}, {T(17)}, {T(18)}
      v_max3_f32 {tmp}, {T(20)}, {T(21)}, {T(22)}
      v_max3_f32 {mx}, {mx}, {T(19)}, {T(23)}
      v_max_f32 {mx}, {mx}, {tmp}''')
allred_rows('v_max_f32', mx, tmp)
a(f'v_mul_f32 {mx}, {sCEXP}, {mx}')
for k in range(8): a(f'v_fma_f32 {T(16 + k)}, {T(16 + k)}, {sCEXP}, -{mx}')
a(f'ds_write_b32 {A["aMW"]}, {mx}')
for k in range(8): a(f'v_exp_f32 {T(16 + k)}, {T(16 + k)}')
for k in range(4): a(f'v_cvt_pk_bf16_f32 {T(28 + k)}, {T(16 + 2 * k)}, {T(17 + 2 * k)}')
for jd in range(8):
    a(f'v_mfma_f32_16x16x32_bf16 {vr(VRAW + 4 * jd, 4)}, {TR(28,4)}, {vr(VOP + 4 * jd, 4)}, 0')
a(f'v_mfma_f32_16x16x32_bf16 {vr(VRAW + 32, 4)}, {TR(28,4)}, {vr(ONES, 4)}, 0')
for jd in range(0, 8, 2):
    a(f'ds_write2_b32 {A["aOW"]}, v{VRAW + 4 * jd}, v{VRAW + 4 * jd + 4} offset0:{jd} offset1:{jd + 1}')
a(f'''ds_write_b32 {A['aLW']}, v{VRAW + 32}
      s_waitcnt lgkmcnt(0)
      s_barrier
      ds_read_b128 {TR(0,4)}, {A['aMLR']}
      ds_read_b128 {TR(4,4)}, {A['aMLR']} offset:16''')
for src in range(4): a(f'ds_read_b64 {TR(8 + 2 * src, 2)}, {A["aOR"]} offset:{src * 2048}')
a(f'''s_waitcnt lgkmcnt(5)
      v_max3_f32 {T(16)}, {T(0)}, {T(1)}, {T(2)}
      v_max_f32 {T(16)}, {T(16)}, {T(3)}''')
tagv(T(16), T(16))
for k in range(4): a(f'v_sub_f32 {T(k)}, {T(k)}, {T(16)}')
for k in range(4): a(f'v_exp_f32 {T(k)}, {T(k)}')
a(f'''s_waitcnt lgkmcnt(0)
      v_mul_f32 {T(20)}, {T(0)}, {T(8)}
      v_mul_f32 {T(21)}, {T(0)}, {T(9)}
      v_mul_f32 {T(17)}, {T(0)}, {T(4)}''')
for k in range(1, 4):
    a(f'''v_fmac_f32 {T(20)}, {T(k)}, {T(8 + 2 * k)}
          v_fmac_f32 {T(21)}, {T(k)}, {T(9 + 2 * k)}
          v_fmac_f32 {T(17)}, {T(k)}, {T(4 + k)}''')
tagv(T(20), T(20)); tagv(T(21), T(21))
lstore(f'buffer_store_dwordx2 {TR(20,2)}, {A["aH2AW"]}, {rWS}, 0 offen')
tagv(T(17), T(17))
a(f'''v_mov_b32 {T(18)}, {T(16)}
      v_mov_b32 {T(19)}, {T(17)}
      s_mov_b64 exec, 1''')
lstore(f'buffer_store_dwordx4 {TR(16,4)}, {A["aH2ASW"]}, {rWS}, 0 offen')
a('s_mov_b64 exec, -1')
ts('att_pub')
a(f'''s_cmp_lg_u32 {sROLE}, 0
      s_cbranch_scc1 L_role1''')

LDO = [f'buffer_load_dwordx4 {TR(4,4)}, {A["aH2ASR"]}, {rWS}, 0 offen sc1',
       f'buffer_load_dwordx4 {TR(0,4)}, {A["aH2AR"]}, {rWS}, 0 offen sc1']
a(f'''s_cmp_lg_u32 {sLAYER}, 0
      s_cbranch_scc1 L_o1''')
a(f'''v_lshrrev_b32 {T(40)}, 2, {vN}
      v_lshl_add_u32 {T(40)}, {vG4}, 3, {T(40)}
      v_lshlrev_b32 {T(40)}, 8, {T(40)}
      v_and_b32 {T(41)}, 3, {vN}
      v_lshl_add_u32 {T(40)}, {T(41)}, 3, {T(40)}
      s_lshl_b32 s3, {sW}, 13
      s_add_u32 s3, s3, {RST}
      v_add_u32 {T(40)}, s3, {T(40)}
      s_waitcnt vmcnt(2)''')
for t in range(8):
    for h in range(2):
        a(f'ds_read_b64_tr_b16 {ar(AWR + 4 * t + 2 * h, 2)}, {T(40)} offset:{h * 1024 + t * 32}')
a('L_o1:')
poll(LDO, [T(i) for i in range(8)], [T(28 + i) for i in range(4)])
ts('o_got')
a(f'v_max_f32_dpp {T(8)}, {T(4)}, {T(4)} row_ror:8 row_mask:0xf bank_mask:0xf')
for r in (4, 2): a(f'v_max_f32_dpp {T(8)}, {T(8)}, {T(8)} row_ror:{r} row_mask:0xf bank_mask:0xf')
allred_rows('v_max_f32', T(8), T(9))
a(f'''v_sub_f32 {T(8)}, {T(4)}, {T(8)}
      v_exp_f32 {T(8)}, {T(8)}
      s_nop 0
      v_mul_f32 {T(5)}, {T(5)}, {T(8)}''')
for k in range(4): a(f'v_mul_f32 {T(k)}, {T(k)}, {T(8)}')
for r in (8, 4, 2): a(f'v_add_f32_dpp {T(5)}, {T(5)}, {T(5)} row_ror:{r} row_mask:0xf bank_mask:0xf')
allred_rows('v_add_f32', T(5), T(9))
a(f'v_rcp_f32 {T(5)}, {T(5)}')
red4(T(0), T(1), T(2), T(3), [8, 4, 2])
a(f'''v_mul_f32 {T(0)}, {T(0)}, {T(5)}
      v_cvt_pk_bf16_f32 {T(0)}, {T(0)}, {T(0)}
      ds_write_b16 {A['aO2W']}, {T(0)}
      s_waitcnt lgkmcnt(0)
      s_barrier
      ds_read_b128 {TR(0,4)}, {A['aO2R']}
      s_waitcnt lgkmcnt(0)''')
for t in range(8):
    a(f'v_mfma_f32_16x16x32_bf16 {TR(8 + 4 * t, 4)}, {TR(0,4)}, {ar(AWR + 4 * t, 4)}, 0')
for g in range(1, 4):
    for u in range(2):
        a(f'v_mov_b32_dpp {T(8 + 4 * u)}, {T(8 + 4 * (2 * g + u))} quad_perm:[0,1,2,3] row_mask:{hex(1 << g)} bank_mask:0xf')
tagv(T(4), T(8)); tagv(T(5), T(12))
lstore(f'buffer_store_dwordx2 {TR(4,2)}, {A["aPW"]}, {rWS}, 0 offen')
ts('o_pub')
a('s_branch L_reduce')

a('L_role1:')
a(f'''s_cmp_lg_u32 {sLAYER}, 0
      s_cbranch_scc1 L_h1''')
a(f'''s_waitcnt vmcnt(0)
      s_barrier
      v_lshrrev_b32 {T(40)}, 2, {vN}
      v_lshl_add_u32 {T(40)}, {vG4}, 3, {T(40)}
      v_mul_u32_u24 {T(40)}, 448, {T(40)}
      v_and_b32 {T(41)}, 3, {vN}
      v_lshl_add_u32 {T(40)}, {T(41)}, 3, {T(40)}
      s_lshl_b32 s3, {sW}, 5
      s_add_u32 s3, s3, {RST}
      v_add_u32 {T(40)}, s3, {T(40)}''')
for t in range(4):
    for h in range(2):
        a(f'ds_read_b64_tr_b16 {ar(AWR + 4 * t + 2 * h, 2)}, {T(40)} offset:{h * 1792 + t * 128}')
for c in range(16):
    a(f'v_lshlrev_b32 v{W2F + 2 * c}, 16, v{W2R + c}')
    a(f'v_and_b32 v{W2F + 2 * c + 1}, {sHIM}, v{W2R + c}')
a(f'''v_lshlrev_b32 {vB1}, 16, {vB1}
      s_waitcnt lgkmcnt(0)''')
for t in range(4):
    a(f'v_mfma_f32_16x16x32_bf16 {TR(8 + 4 * t, 4)}, {vr(ONES,4)}, {ar(AWR + 4 * t, 4)}, 0')
for g in range(1, 4):
    a(f'v_mov_b32_dpp {T(8)}, {T(8 + 4 * g)} quad_perm:[0,1,2,3] row_mask:{hex(1 << g)} bank_mask:0xf')
tagv(T(8), T(8))
lstore(f'buffer_store_dword {T(8)}, {A["aH3BW"]}, {rWS}, {sCS1D} offen')
a(f'''s_cmp_ge_u32 {sI}, 14
      s_cbranch_scc1 L_h1''')
poll([f'buffer_load_dwordx4 {TR(0,4)}, {A["aH3BR"]}, {rWS}, {sCS1D} offen sc1'], [T(i) for i in range(4)], [T(4), T(5)])
a(f'''v_add_f32 {T(0)}, {T(0)}, {T(1)}
      v_add_f32 {T(2)}, {T(2)}, {T(3)}
      v_add_f32 {vCSM}, {T(0)}, {T(2)}''')
allred_rows('v_add_f32', vCSM, T(1))
a('L_h1:')
ts('h_wait')
sf(A['aSFH'])
ts('h_got')
a(f'''ds_write_b16_d16_hi {A['aHPW']}, {vXN}
      s_waitcnt lgkmcnt(0)
      ds_read_b128 {TR(0,4)}, {A['aHPR']}
      s_cmp_eq_u32 {sW}, 0
      s_cbranch_scc0 L_h2''')
slice_stats(A['aST2W'], T(16), T(17), T(18))
a('L_h2:')
a('s_waitcnt lgkmcnt(0)')
for t in range(4):
    a(f'v_mfma_f32_16x16x32_bf16 {TR(8 + 4 * t, 4)}, {TR(0,4)}, {ar(AWR + 4 * t, 4)}, 0')
a(f'v_or_b32 {T(4)}, {vXN}, {vTAG}')
for g in range(1, 4):
    a(f'v_mov_b32_dpp {T(8)}, {T(8 + 4 * g)} quad_perm:[0,1,2,3] row_mask:{hex(1 << g)} bank_mask:0xf')
tagv(T(8), T(8))
lstore(f'buffer_store_dword {T(8)}, {A["aH3BW"]}, {rWS}, 0 offen')
a(f'''s_cmp_eq_u32 {sW}, 1
      s_cbranch_scc0 L_h3''')
lstore(f'buffer_store_dword {T(4)}, {A["aX1W"]}, {rWS}, 0 offen')
a('L_h3:')
ts('h_pub')
a(f'''s_cmp_ge_u32 {sI}, 14
      s_cbranch_scc1 L_mz''')
LD_M = f'buffer_load_dwordx4 {TR(0,4)}, {A["aH3BR"]}, {rWS}, 0 offen sc1'
poll([LD_ST(ST2 - ST1), LD_M], [T(8 + i) for i in range(4)], [T(28), T(29)])
a(LD_M)
ln_math(T(8), T(9), T(10))
a('s_waitcnt vmcnt(0)')
chk([T(i) for i in range(4)], [T(28), T(29)])
a('s_cbranch_vccz L_m1')
poll([LD_M], [T(i) for i in range(4)], [T(28), T(29)])
a('L_m1:')
ts('m_got')
h, ea, e2, n1, d1, n2 = T(0), T(4), T(5), T(6), T(7), T(8)
a(f'''v_add_f32 {T(0)}, {T(0)}, {T(1)}
      v_add_f32 {T(2)}, {T(2)}, {T(3)}
      v_add_f32 {h}, {T(0)}, {T(2)}''')
allred_rows('v_add_f32', h, T(1))
a(f'''v_fma_f32 {h}, -{vMU}, {vCSM}, {h}
      v_mul_f32 {h}, {h}, {vRS}
      v_cvt_pk_bf16_f32 {h}, {h}, {h}
      v_and_b32 {h}, {sHIM}, {h}
      v_add_f32 {h}, {h}, {vB1}
      v_cvt_pk_bf16_f32 {h}, {h}, {h}
      v_and_b32 {h}, {sHIM}, {h}
      v_mul_f32_e64 {ea}, {sNL2E}, |{h}|
      v_exp_f32 {ea}, {ea}
      v_cmp_lt_f32 vcc, 0, {h}
      v_mul_f32 {e2}, {ea}, {ea}
      v_fma_f32 {n1}, {ea}, 2.0, 1.0
      v_fma_f32 {n2}, {ea}, 2.0, {e2}
      v_fma_f32 {d1}, {e2}, 2.0, {n1}
      v_add_f32 {e2}, 2.0, {n2}
      v_cndmask_b32 {d1}, {e2}, {d1}, vcc
      v_cndmask_b32 {n1}, {n2}, {n1}, vcc
      v_rcp_f32 {d1}, {d1}
      v_mul_f32 {n1}, {n1}, {h}
      v_mul_f32 {h}, {n1}, {d1}
      v_cvt_pk_bf16_f32 {h}, {h}, {h}
      v_and_b32 {h}, {sHIM}, {h}''')
acc = [T(12), T(13), T(14), T(15)]
for c in range(16):
    for u in range(2):
        d = acc[(c & 1) * 2 + u]
        op = 'v_mul_f32_dpp' if c < 2 else 'v_fmac_f32_dpp'
        a(f'{op} {d}, {h}, v{W2F + 2 * c + u} row_newbcast:{c} row_mask:0xf bank_mask:0xf')
a(f'''v_add_f32 {T(12)}, {T(12)}, {T(14)}
      v_add_f32 {T(13)}, {T(13)}, {T(15)}''')
tagv(T(12), T(12)); tagv(T(13), T(13))
a('s_branch L_mp')
a('L_mz:')
a(f'''v_mov_b32 {T(12)}, {vTAG}
      v_mov_b32 {T(13)}, {vTAG}''')
a('L_mp:')
lstore(f'buffer_store_dwordx2 {TR(12,2)}, {A["aPW"]}, {rWS}, 0 offen')
ts('m_pub')

a('L_reduce:')
a(f'''s_cmp_lg_u32 {sW}, 0
      s_cbranch_scc1 L_next''')
poll([f'buffer_load_dwordx4 {TR(0,4)}, {A["aRR"]}, {rWS}, 0 offen sc1',
      f'buffer_load_dwordx4 {TR(4,4)}, {A["aRR"]}, {rWS}, 0 offen offset:1024 sc1'],
     [T(i) for i in range(8)], [T(28 + i) for i in range(4)])
ts('r_got')
for k in range(4): a(f'v_add_f32 {T(k)}, {T(k)}, {T(4 + k)}')
red4(T(0), T(1), T(2), T(3), [8])
tagv(T(0), T(0))
a(f'''s_mov_b32 exec_lo, 0x00ff00ff
      s_mov_b32 exec_hi, 0x00ff00ff
      buffer_store_dword {T(0)}, {A['aRW']}, {rWS}, 0 offen sc1
      s_mov_b64 exec, -1''')
ts('r_pub')
a('L_next:')
a(f'''s_add_u32 {sLAYER}, {sLAYER}, 1
      s_cmp_eq_u32 {sLAYER}, 1
      s_cbranch_scc1 L_qfront
      s_or_b32 s3, {sG}, {sCG}
      s_cmp_eq_u32 s3, 0
      s_cbranch_scc1 L_qfront
      s_branch L_exit''')
a('L_final:')
a(f'''s_mov_b32 exec_lo, 0x00ff00ff
      s_mov_b32 exec_hi, 0x00ff00ff
      buffer_store_short_d16_hi {vXN}, {A['aOUT']}, {rOUT}, 0 offen
      s_mov_b64 exec, -1
      s_or_b32 s3, {sJ}, {sW}
      s_cmp_lg_u32 s3, 0
      s_cbranch_scc1 L_exit
      s_add_u32 s3, {sEP}, 2
      v_mov_b32 {T(0)}, s3
      v_mov_b32 {T(1)}, 0
      s_mov_b64 exec, 1
      buffer_store_dword {T(0)}, {T(1)}, {rWS}, 0 offen sc1
      s_mov_b64 exec, -1''')
a('L_exit:')
if DEBUG_TS:
    a(f's_min_u32 {sLAYER}, {sLAYER}, 1')
    ts('exit')
    ts('exit2')
    a(f'''s_lshl_b32 s3, s2, 10
          s_lshl_b32 s92, {sW}, 8
          s_add_u32 s3, s3, s92
          s_add_u32 s3, s3, {TSB}
          v_lshl_add_u32 {T(0)}, {vL}, 2, s3
          buffer_store_dword {vTS}, {T(0)}, {rWS}, 0 offen''')
    if '--dbgtime' in sys.argv:
        a(f'''s_or_b32 s3, s2, {sW}
              s_cmp_lg_u32 s3, 0
              s_cbranch_scc1 L_end
              s_load_dwordx2 s[68:69], s[0:1], 80
              s_waitcnt lgkmcnt(0)
              v_writelane_b32 {vTS}, s94, 15
              s_mov_b32 s70, 256
              s_mov_b32 s71, 0x20000
              v_readlane_b32 s3, {vTS}, 0
              v_lshlrev_b32 {T(0)}, 2, {vL}
              v_subrev_u32 {T(1)}, s3, {vTS}
              buffer_store_dword {T(1)}, {T(0)}, s[68:71], 0 offen''')
a('L_bail:')
a('L_end:')
a('s_endpgm')
for s in stubs: a(s)
a('L_codeend:')
a.raw(f'''.section .rodata,"a"
.p2align 6
.amdhsa_kernel {NAME}_kernel
  .amdhsa_next_free_vgpr {256 + NAGPR}
  .amdhsa_next_free_sgpr 102
  .amdhsa_accum_offset 256
  .amdhsa_group_segment_fixed_size 0
  .amdhsa_kernarg_size 96
  .amdhsa_user_sgpr_count 2
  .amdhsa_user_sgpr_kernarg_segment_ptr 1
  .amdhsa_system_sgpr_workgroup_id_x 1
.end_amdhsa_kernel''')
open(OUT, 'w').write(a.text())
if DEBUG_TS:
    import json
    json.dump(TSN, open(OUT + '.ts.json', 'w'))
print('written', OUT, 'nops', a.nops_inserted, 'stamps', _ts[0])

import subprocess
subprocess.check_call(['clang', '-x', 'assembler', '-target', 'amdgcn-amd-amdhsa', '-mcpu=gfx950', '-c', OUT, '-o', 'gen_check.o'])
```
